```python
import torch

def _softmax(x, axis=-1):
    return torch.softmax(x, dim=axis)
def _gelu(x):
    return torch.nn.functional.gelu(x, approximate="tanh")
def _silu(x):
    return torch.nn.functional.silu(x)
def _sigmoid(x):
    return torch.sigmoid(x)
def _layernorm(x, axis=-1, eps=1e-5):
    m = x.mean(dim=axis, keepdim=True)
    v = x.var(dim=axis, keepdim=True, unbiased=False)
    return (x - m) / torch.sqrt(v + eps)
def _scatter_add(tgt, idx, src, axis=0):
    return tgt.clone().index_add_(axis, idx, src)
def _segment_sum(src, seg, n):
    out = torch.zeros((n,) + src.shape[1:], dtype=src.dtype)
    return out.index_add_(0, seg, src)
def _pad(x, pw):
    flat = tuple(v for pair in reversed(pw) for v in pair)
    return torch.nn.functional.pad(x, flat)

kernel_name = 'standalone__self_sup_conv_stem_hubert__speech'

def setup_inputs():

    _w = (lambda a: (lambda t: t.to(torch.bfloat16) if t.is_floating_point() else t)(torch.as_tensor(a)))
    B, T, D, K = 2, 1000, 512, 31
    scale = (1.0 / (K * D)) ** 0.5
    return {
        "x": _w((lambda *s: torch.randn(*s, dtype=torch.bfloat16) * 0.05)(B, T, D)),
        "w": _w((lambda *s: torch.randn(*s, dtype=torch.bfloat16) * 0.05)(K, D, D) * scale),
        "b": _w((lambda *s: torch.randn(*s, dtype=torch.bfloat16) * 0.05)(D) * 0.1),
        "gamma": _w(torch.ones((D,), dtype=float)),
        "beta": _w(torch.zeros((D,), dtype=float)),
    }

def reference(x, w, b, gamma, beta):
    B, T, D = x.shape
    K = w.shape[0]
    s = 2
    L = (T - K) // s + 1
    y = torch.einsum('blc,cd->bld', x[:, 0 : s * L : s, :], w[0])
    for i in range(1, K):
        y = y + torch.einsum('blc,cd->bld', x[:, i : i + s * L : s, :], w[i])
    y = y + b[None, None, :]
    mu = y.mean(1, keepdims=True)
    var = ((y - mu) ** 2).mean(1, keepdims=True)
    yn = (y - mu) / torch.sqrt(var + 1e-5)
    yn = yn * gamma[None, None, :] + beta[None, None, :]
    return _gelu(yn)
```

```python
import sys

NAME = "standalone__self_sup_conv_stem_hubert__speech"

HEADER = """; Kernarg layout for this problem (64 bytes, ptrs only, base s[0:1]):
"""

X_BYTES = 2 * 1000 * 512 * 2
W_BYTES = 31 * 512 * 512 * 2
OUT_BYTES = 2 * 485 * 512 * 2
EX_BYTES = 256 * 32768
XROWS = 288
XLDS = XROWS * 256
RING_UNITS = 20
RING_BASE = XLDS
LDS_K1 = XLDS + RING_UNITS * 4096


class Asm:
    def __init__(self):
        self.lines = []

    def __call__(self, s):
        self.lines.append("    " + s)

    def label(self, s):
        self.lines.append(s + ":")

    def comment(self, s):
        self.lines.append("    ; " + s)

    def raw(self, s):
        self.lines.append(s)

    def text(self):
        return "\n".join(self.lines) + "\n"


def vr(b, n=1):
    return f"v{b}" if n == 1 else f"v[{b}:{b+n-1}]"


def srd(a, d, lo, hi, size):
    a(f"s_mov_b32 s{d}, s{lo}")
    a(f"s_and_b32 s{d+1}, s{hi}, 0xffff")
    a(f"s_mov_b32 s{d+2}, {size}")
    a(f"s_mov_b32 s{d+3}, 0x20000")


def steps_list():
    st = []
    for cb in range(4):
        for p in range(2):
            T = 16 - p
            for i in range(T):
                st.append((cb, p, i, 2 * i + p))
    return st


def gen_k1(a, opt):
    RX = opt.get("RX", 20)
    V_ACC = 0 + 8
    V_W = 40
    V_X = 52
    V_XA = V_X + 4 * RX
    V_WA = V_XA + 12
    NV = V_WA + 2
    a.raw(".globl conv_gemm_kernel")
    a.raw(".p2align 8")
    a.raw(".type conv_gemm_kernel,@function")
    a.label("conv_gemm_kernel")
    a("s_cmp_ge_u32 s2, 256")
    a("s_cbranch_scc1 K1_END")
    a("s_load_dwordx4 s[4:7], s[0:1], 0")
    a("s_load_dwordx2 s[8:9], s[0:1], 56")
    a("v_lshrrev_b32 v1, 6, v0")
    a("v_and_b32 v2, 63, v0")
    a("s_and_b32 s25, s2, 3")
    a("v_readfirstlane_b32 s24, v1")
    a("s_lshr_b32 s30, s2, 3")
    a("s_and_b32 s28, s30, 3")
    a("s_bfe_u32 s27, s30, 0x10002")
    a("s_lshr_b32 s26, s30, 3")
    a("s_and_b32 s31, s2, 4")
    a("s_add_u32 s26, s26, s31")
    a("s_mul_i32 s32, s27, 1024000")
    a("s_lshl_b32 s33, s28, 18")
    a("s_add_u32 s32, s32, s33")
    a("s_lshl_b32 s33, s25, 8")
    a("s_add_u32 s32, s32, s33")
    a("s_lshl_b32 s33, s24, 12")
    a("s_add_u32 s32, s32, s33")
    a("s_lshl_b32 s34, s24, 10")
    a("v_lshrrev_b32 v3, 4, v2")
    a("v_lshlrev_b32 v3, 10, v3")
    a("v_and_b32 v4, 15, v2")
    a("v_lshlrev_b32 v4, 4, v4")
    a("s_lshr_b32 s33, s24, 2")
    a("s_lshl_b32 s33, s33, 5")
    a("v_xor_b32 v4, s33, v4")
    a("v_add_u32 v4, v3, v4")
    a("v_xor_b32 v5, 64, v4")
    a("v_xor_b32 v6, 0x80, v4")
    a("v_xor_b32 v7, 0xc0, v4")
    a("s_waitcnt lgkmcnt(0)")
    srd(a, 12, 4, 5, X_BYTES)
    srd(a, 16, 6, 7, W_BYTES)
    srd(a, 20, 8, 9, EX_BYTES)
    a("s_cmp_ge_u32 s24, 4")
    a("s_cbranch_scc1 K1_LOADER")

    def x_pieces():
        for i in range(9):
            a(f"s_mov_b32 m0, s34")
            a(f"s_add_u32 s34, s34, 8192")
            a(f"buffer_load_dwordx4 v{4 + (i & 3)}, s[12:15], s32 offen lds")
            a(f"s_add_u32 s32, s32, 32768")

    x_pieces()
    a("v_and_b32 v3, 15, v2")
    a("v_lshrrev_b32 v1, 4, v2")
    for d in range(3):
        a(f"v_add_u32 v4, {d}, v3")
        a("v_and_b32 v4, 7, v4")
        a("v_lshlrev_b32 v4, 1, v4")
        a("v_xor_b32 v4, v1, v4")
        a("v_lshlrev_b32 v4, 4, v4")
        a(f"v_lshl_add_u32 v{V_XA + d}, v3, 12, v4")
    for cb in range(1, 4):
        for d in range(3):
            a(f"v_xor_b32 v{V_XA + 3*cb + d}, {cb << 6}, v{V_XA + d}")
    a("v_lshrrev_b32 v4, 2, v3")
    a("v_lshl_add_u32 v4, v1, 3, v4")
    a("v_lshlrev_b32 v4, 7, v4")
    a("v_lshrrev_b32 v5, 3, v3")
    a("v_and_b32 v6, 1, v1")
    a("v_lshl_or_b32 v5, v6, 1, v5")
    a("v_xor_b32 v5, s24, v5")
    a("v_lshl_add_u32 v4, v5, 5, v4")
    a("v_and_b32 v5, 3, v3")
    a("v_lshl_add_u32 v4, v5, 3, v4")
    a(f"v_add_u32 v{V_WA}, {RING_BASE}, v4")
    a(f"v_add_u32 v{V_WA+1}, {RING_BASE + 40960}, v4")
    a("s_lshl_b32 s33, s24, 2")
    a("v_add_u32 v7, s33, v1")
    a("v_lshlrev_b32 v7, 15, v7")
    a("v_lshl_add_u32 v7, v3, 4, v7")
    a("s_lshl_b32 s35, s27, 3")
    a("s_add_u32 s35, s35, s26")
    a("s_lshl_b32 s35, s35, 19")
    a("s_lshl_b32 s33, s25, 13")
    a("s_add_u32 s35, s35, s33")
    a("s_lshl_b32 s33, s28, 11")
    a("s_add_u32 s35, s35, s33")
    a("s_waitcnt vmcnt(0)")
    a("s_barrier")

    st = steps_list()
    NS = len(st)
    frags = []
    pass_off = {}
    for cb in range(4):
        for p in range(2):
            pass_off[(cb, p)] = len(frags)
            for f in range(16 - p + 7):
                frags.append((cb, p, f))
    lds_q = []

    def issue_x(F):
        cb, p, f = frags[F]
        e = 2 * f + p
        d = e >> 4
        r = V_X + 4 * (F % RX)
        a(f"ds_read_b128 {vr(r,4)}, v{V_XA + 3*cb + d} offset:{e*256}")
        lds_q.append(("x", F))

    def issue_w(t, h):
        u = t % RING_UNITS
        base = V_WA + (1 if u >= 10 else 0)
        off = (u % 10) * 4096 + h * 512
        r = V_W + 4 * (t % 3) + 2 * h
        a(f"ds_read_b64_tr_b16 {vr(r,2)}, v{base} offset:{off}")
        lds_q.append(("w", t, h))

    def wait_for(tags):
        idx = max(lds_q.index(tg) for tg in tags)
        n = len(lds_q) - 1 - idx
        assert n <= 15, n
        a(f"s_waitcnt lgkmcnt({n})")

    nx = 0
    issue_w(0, 0); issue_w(0, 1)
    for F in range(8):
        issue_x(F); nx += 1
    issue_w(1, 0); issue_w(1, 1)
    for F in range(8, 10):
        issue_x(F); nx += 1

    for t in range(NS):
        cb, p, i, tap = st[t]
        off = pass_off[(cb, p)]
        fmin = off + i
        need = [("w", t, 0), ("w", t, 1)] + [("x", off + i + j) for j in range(8)]
        side = []
        if (t + 2) % 4 == 0 and t + 2 < NS:
            side.append(("bar",))
        if t + 2 < NS:
            side.append(("w", t + 2, 0))
            side.append(("w", t + 2, 1))
        cnt = 0
        tmp = nx
        while cnt < 2 and tmp < len(frags) and tmp - fmin < RX:
            side.append(("x", tmp))
            tmp += 1
            cnt += 1
        wait_for(need)
        for j in range(8):
            acc = V_ACC + 4 * j
            xr = V_X + 4 * ((off + i + j) % RX)
            wr = V_W + 4 * (t % 3)
            c = "0" if t == 0 else vr(acc, 4)
            a(f"v_mfma_f32_16x16x32_bf16 {vr(acc,4)}, {vr(wr,4)}, {vr(xr,4)}, {c}")
            if side:
                s = side.pop(0)
                if s[0] == "bar":
                    a("s_barrier")
                elif s[0] == "w":
                    issue_w(s[1], s[2])
                else:
                    issue_x(s[1]); nx += 1
        assert not side
    a("s_nop 7")
    a("s_nop 3")
    for j in range(8):
        a(f"buffer_store_dwordx4 {vr(V_ACC + 4*j, 4)}, v7, s[20:23], s35 offen offset:{j*256}")
    a("s_endpgm")

    a.label("K1_LOADER")
    a("s_sub_u32 s36, s24, 4")
    a("v_lshrrev_b32 v8, 3, v2")
    a("s_lshl_b32 s33, s36, 3")
    a("v_add_u32 v8, s33, v8")
    a("v_lshlrev_b32 v8, 10, v8")
    a("v_bfe_u32 v9, v2, 4, 1")
    a("s_and_b32 s33, s36, 1")
    a("s_lshl_b32 s33, s33, 1")
    a("v_or_b32 v9, s33, v9")
    a("v_lshlrev_b32 v9, 1, v9")
    a("v_and_b32 v10, 7, v2")
    a("v_xor_b32 v9, v9, v10")
    a("v_lshl_add_u32 v8, v9, 4, v8")
    a("s_lshl_b32 s33, s26, 7")
    a("s_lshl_b32 s37, s25, 17")
    a("s_add_u32 s33, s33, s37")
    a("v_add_u32 v8, s33, v8")
    a("s_mov_b32 s40, 0")
    a("s_mov_b32 s41, 0")
    a("s_lshl_b32 s43, s36, 10")
    a(f"s_add_u32 s43, s43, {RING_BASE}")
    a(f"s_add_u32 s44, s43, {RING_UNITS*4096}")
    a("s_mov_b32 s42, s43")

    def w_unit():
        a("s_mov_b32 m0, s42")
        a("s_lshl_b32 s45, s40, 19")
        a("s_add_u32 s45, s45, s41")
        a("buffer_load_dwordx4 v8, s[16:19], s45 offen lds")
        a("s_add_u32 s42, s42, 4096")
        a("s_cmp_eq_u32 s42, s44")
        a("s_cselect_b32 s42, s43, s42")
        a("s_add_u32 s40, s40, 2")
        a("s_cmp_eq_u32 s40, 32")
        a("s_cselect_b32 s40, 1, s40")
        a("s_cmp_eq_u32 s40, 31")
        a("s_cselect_b32 s40, 0, s40")
        a("s_cselect_b32 s46, 32768, 0")
        a("s_add_u32 s41, s41, s46")

    def w_slot():
        for _ in range(4):
            w_unit()

    w_slot()
    x_pieces()
    w_slot()
    w_slot()
    a("s_waitcnt vmcnt(8)")
    a("s_barrier")
    a("s_mov_b32 s47, 28")
    a.label("K1_LLOOP")
    w_slot()
    a("s_waitcnt vmcnt(8)")
    a("s_barrier")
    a("s_sub_u32 s47, s47, 1")
    a("s_cmp_lg_u32 s47, 0")
    a("s_cbranch_scc1 K1_LLOOP")
    a("s_waitcnt vmcnt(4)")
    a("s_barrier")
    a("s_waitcnt vmcnt(0)")
    a("s_barrier")
    a.label("K1_END")
    a("s_endpgm")
    return NV


def dpp_reduce(a, regs):
    for mod in ["row_shr:1 row_mask:0xf bank_mask:0xf bound_ctrl:0",
                "row_shr:2 row_mask:0xf bank_mask:0xf bound_ctrl:0",
                "row_shr:4 row_mask:0xf bank_mask:0xf bound_ctrl:0",
                "row_shr:8 row_mask:0xf bank_mask:0xf bound_ctrl:0",
                "row_bcast:15 row_mask:0xa bank_mask:0xf",
                "row_bcast:31 row_mask:0xc bank_mask:0xf"]:
        for r in regs:
            a(f"v_add_f32_dpp v{r}, v{r}, v{r} {mod}")


def gen_k2(a, opt):
    a.raw(".globl norm_kernel")
    a.raw(".p2align 8")
    a.raw(".type norm_kernel,@function")
    a.label("norm_kernel")
    a("s_cmp_ge_u32 s2, 256")
    a("s_cbranch_scc1 K2_END")
    a("s_load_dwordx4 s[4:7], s[0:1], 16")
    a("s_load_dwordx4 s[8:11], s[0:1], 32")
    a("s_load_dwordx2 s[12:13], s[0:1], 56")
    a("s_and_b32 s26, s2, 7")
    a("s_lshr_b32 s27, s2, 7")
    a("s_bfe_u32 s28, s2, 0x40003")
    a("s_lshl_b32 s29, s27, 3")
    a("s_add_u32 s29, s29, s26")
    a("s_lshl_b32 s29, s29, 4")
    a("s_add_u32 s29, s29, s28")
    a("s_lshl_b32 s29, s29, 15")
    a("s_add_u32 s30, s29, 8192")
    a("s_add_u32 s31, s29, 16384")
    a("s_add_u32 s32, s29, 24576")
    a("v_lshlrev_b32 v1, 4, v0")
    a("s_lshl_b32 s33, s26, 7")
    a("s_lshl_b32 s34, s28, 3")
    a("s_add_u32 s33, s33, s34")
    a("s_waitcnt lgkmcnt(0)")
    srd(a, 16, 12, 13, EX_BYTES)
    srd(a, 20, 10, 11, OUT_BYTES)
    a("buffer_load_dwordx4 v[4:7], v1, s[16:19], s29 offen")
    a("buffer_load_dwordx4 v[8:11], v1, s[16:19], s30 offen")
    a("buffer_load_dwordx4 v[12:15], v1, s[16:19], s31 offen")
    a("buffer_load_dwordx4 v[16:19], v1, s[16:19], s32 offen")
    a("s_load_dwordx2 s[36:37], s[4:5], s33")
    a("s_load_dwordx2 s[38:39], s[6:7], s33")
    a("s_load_dwordx2 s[40:41], s[8:9], s33")
    a("v_lshrrev_b32 v2, 7, v0")
    a("v_lshlrev_b32 v2, 7, v2")
    a("v_and_b32 v3, 15, v0")
    a("v_lshl_add_u32 v2, v3, 3, v2")
    a("v_bfe_u32 v3, v0, 4, 3")
    a("v_add_u32 v2, v2, v3")
    a("s_movk_i32 s35, 485")
    a("v_cmp_gt_u32 s[44:45], s35, v2")
    a("s_mul_i32 s35, s27, 485")
    a("v_add_u32 v2, s35, v2")
    a("v_lshlrev_b32 v2, 10, v2")
    a("v_add_u32 v2, s33, v2")
    a("v_lshrrev_b32 v3, 6, v0")
    a("v_lshlrev_b32 v3, 4, v3")
    a("v_mov_b32 v40, 0")
    a("s_waitcnt lgkmcnt(0)")
    for k, (src, dst) in enumerate([(36, 48), (38, 52), (40, 56)]):
        a(f"s_lshl_b32 s{dst}, s{src}, 16")
        a(f"s_and_b32 s{dst+1}, s{src}, 0xffff0000")
        a(f"s_lshl_b32 s{dst+2}, s{src+1}, 16")
        a(f"s_and_b32 s{dst+3}, s{src+1}, 0xffff0000")
    a("s_waitcnt vmcnt(2)")
    for r in range(4):
        a(f"v_add_f32 v{4+r}, v{4+r}, v{8+r}")
    a("s_waitcnt vmcnt(0)")
    for r in range(4):
        a(f"v_add_f32 v{12+r}, v{12+r}, v{16+r}")
    for r in range(4):
        a(f"v_add_f32 v{4+r}, v{4+r}, v{12+r}")
    for r in range(4):
        a(f"v_add_f32 v{4+r}, s{48+r}, v{4+r}")
    for r in range(4):
        a(f"v_cndmask_b32 v{8+r}, 0, v{4+r}, s[44:45]")
    a("s_nop 1")
    dpp_reduce(a, [8, 9, 10, 11])
    a("s_mov_b64 s[46:47], exec")
    a("s_mov_b32 exec_lo, 0")
    a("s_mov_b32 exec_hi, 0x80000000")
    a("ds_write_b128 v3, v[8:11]")
    a("s_mov_b64 exec, s[46:47]")
    a("s_waitcnt lgkmcnt(0)")
    a("s_barrier")

    def gather(base):
        for w in range(8):
            a(f"ds_read_b128 v[{12+4*w}:{15+4*w}], v40 offset:{base + 16*w}") if w < 7 else None
        a(f"ds_read_b128 v[44:47], v40 offset:{base + 16*7}")
        a("s_waitcnt lgkmcnt(0)")
        for r in range(4):
            a(f"v_add_f32 v{12+r}, v{12+r}, v{16+r}")
            a(f"v_add_f32 v{20+r}, v{20+r}, v{24+r}")
            a(f"v_add_f32 v{28+r}, v{28+r}, v{32+r}")
            a(f"v_add_f32 v{36+r}, v{36+r}, v{44+r}")
        for r in range(4):
            a(f"v_add_f32 v{12+r}, v{12+r}, v{20+r}")
            a(f"v_add_f32 v{28+r}, v{28+r}, v{36+r}")
        for r in range(4):
            a(f"v_add_f32 v{12+r}, v{12+r}, v{28+r}")

    gather(0)
    import struct
    inv485 = struct.unpack("<I", struct.pack("<f", 1.0 / 485.0))[0]
    a(f"s_mov_b32 s60, {inv485:#x}")
    for r in range(4):
        a(f"v_mul_f32 v{12+r}, s60, v{12+r}")
    for r in range(4):
        a(f"v_sub_f32 v{4+r}, v{4+r}, v{12+r}")
    for r in range(4):
        a(f"v_mul_f32 v{8+r}, v{4+r}, v{4+r}")
    for r in range(4):
        a(f"v_cndmask_b32 v{8+r}, 0, v{8+r}, s[44:45]")
    a("s_nop 1")
    dpp_reduce(a, [8, 9, 10, 11])
    a("s_mov_b32 exec_lo, 0")
    a("s_mov_b32 exec_hi, 0x80000000")
    a("ds_write_b128 v3, v[8:11] offset:128")
    a("s_mov_b64 exec, s[46:47]")
    a("s_waitcnt lgkmcnt(0)")
    a("s_barrier")
    gather(128)
    eps = struct.unpack("<I", struct.pack("<f", 1e-5))[0]
    a(f"v_mov_b32 v20, {eps:#x}")
    for r in range(4):
        a(f"v_fma_f32 v{12+r}, v{12+r}, s60, v20")
    for r in range(4):
        a(f"v_rsq_f32 v{12+r}, v{12+r}")
    a("s_nop 0")
    for r in range(4):
        a(f"v_mul_f32 v{12+r}, s{52+r}, v{12+r}")
    for r in range(4):
        a(f"v_mov_b32 v{16+r}, s{56+r}")
    for r in range(4):
        a(f"v_fma_f32 v{4+r}, v{4+r}, v{12+r}, v{16+r}")
    c1 = -2.0 * 1.4426950408889634 * 0.7978845608028654
    c2 = c1 * 0.044715
    f2u = lambda x: struct.unpack("<I", struct.pack("<f", x))[0]
    a(f"s_mov_b32 s61, {f2u(c2):#x}")
    a(f"v_mov_b32 v20, {f2u(c1):#x}")
    for r in range(4):
        a(f"v_mul_f32 v{8+r}, v{4+r}, v{4+r}")
    for r in range(4):
        a(f"v_fma_f32 v{8+r}, v{8+r}, s61, v20")
    for r in range(4):
        a(f"v_mul_f32 v{8+r}, v{8+r}, v{4+r}")
    for r in range(4):
        a(f"v_exp_f32 v{8+r}, v{8+r}")
    a("s_nop 0")
    for r in range(4):
        a(f"v_add_f32 v{8+r}, 1.0, v{8+r}")
    for r in range(4):
        a(f"v_rcp_f32 v{8+r}, v{8+r}")
    a("s_nop 0")
    for r in range(4):
        a(f"v_mul_f32 v{4+r}, v{4+r}, v{8+r}")
    a("v_cvt_pk_bf16_f32 v8, v4, v5")
    a("v_cvt_pk_bf16_f32 v9, v6, v7")
    a("s_and_saveexec_b64 s[46:47], s[44:45]")
    a("s_cbranch_execz K2_END")
    a("buffer_store_dwordx2 v[8:9], v2, s[20:23], 0 offen")
    a.label("K2_END")
    a("s_endpgm")
    return 48


def kd(name, nv, ns):
    acc = (nv + 3) // 4 * 4
    return f""".p2align 6
.amdhsa_kernel {name}
  .amdhsa_next_free_vgpr {nv}
  .amdhsa_next_free_sgpr {ns}
  .amdhsa_accum_offset {acc}
  .amdhsa_group_segment_fixed_size 0
  .amdhsa_kernarg_size 64
  .amdhsa_user_sgpr_count 2
  .amdhsa_user_sgpr_kernarg_segment_ptr 1
  .amdhsa_system_sgpr_workgroup_id_x 1
  .amdhsa_float_denorm_mode_32 3
.end_amdhsa_kernel
"""


def main():
    opt = {}
    for arg in sys.argv[2:]:
        k, v = arg.split("=")
        opt[k] = int(v)
    a = Asm()
    nv1 = gen_k1(a, opt)
    nv2 = gen_k2(a, opt)
    out = HEADER
    out += f"; @launch kernel=conv_gemm_kernel grid=(256,1,1) block=(512,1,1) lds={LDS_K1}\n"
    out += f"; @launch kernel=norm_kernel grid=(256,1,1) block=(512,1,1) lds=256\n"
    out += '.amdgcn_target "amdgcn-amd-amdhsa--gfx950"\n.text\n'
    out += a.text()
    out += '.section .rodata,"a"\n'
    out += kd("conv_gemm_kernel", nv1, 64)
    out += kd("norm_kernel", nv2, 64)
    open(sys.argv[1], "w").write(out)


if __name__ == "__main__":
    main()
```

```python
import sys, struct

NAME = "standalone__self_sup_conv_stem_hubert__speech"
KNAME = NAME + "_kernel"

HEADER = """; Kernarg layout for this problem (64 bytes, ptrs only, base s[0:1]):
"""

W_BYTES = 31 * 512 * 512 * 2
OUT_BYTES = 2 * 485 * 512 * 2
EX_BYTES = 256 * 32768
PLANE = 18432
XLDS = 4 * PLANE
RING_UNITS = 20
RING_BASE = XLDS
LDS_BYTES = XLDS + RING_UNITS * 4096
SPIN_LIMIT = 40000

f2u = lambda x: struct.unpack("<I", struct.pack("<f", x))[0]


class Asm:
    def __init__(self):
        self.lines = []
    def __call__(self, s):
        self.lines.append("    " + s)
    def label(self, s):
        self.lines.append(s + ":")
    def comment(self, s):
        self.lines.append("    ; " + s)
    def raw(self, s):
        self.lines.append(s)
    def text(self):
        return "\n".join(self.lines) + "\n"


def vr(b, n=1):
    return f"v{b}" if n == 1 else f"v[{b}:{b+n-1}]"


def srd(a, d, lo, hi, size):
    a(f"s_mov_b32 s{d}, s{lo}")
    a(f"s_and_b32 s{d+1}, s{hi}, 0xffff")
    a(f"s_mov_b32 s{d+2}, {size}")
    a(f"s_mov_b32 s{d+3}, 0x20000")


class Stamps:
    def __init__(self, a, on):
        self.a = a; self.on = on
    def init(self):
        if not self.on: return
        for i in range(64, 96):
            self.a(f"s_mov_b32 s{i}, 0")
    def stamp(self, i):
        if not self.on: return
        self.a(f"s_memrealtime s[{64+2*i}:{65+2*i}]")
    def cstamp(self, i):
        if not self.on: return
        self.a(f"s_memtime s[{64+2*i}:{65+2*i}]")
    def dump(self, wsreg, wave_sreg):
        if not self.on: return
        a = self.a
        a("s_waitcnt lgkmcnt(0)")
        a(f"s_add_u32 s96, s{wsreg}, {128<<20}")
        a(f"s_addc_u32 s97, s{wsreg+1}, 0")
        a("s_and_b32 s97, s97, 0xffff")
        a("s_mov_b32 s98, 0x100000")
        a("s_mov_b32 s99, 0x20000")
        a("s_lshl_b32 s100, s2, 3")
        a(f"s_add_u32 s100, s100, s{wave_sreg}")
        a("s_lshl_b32 s100, s100, 7")
        a("s_mov_b64 exec, 1")
        a("v_mov_b32 v1, 0")
        for i in range(16):
            a(f"v_mov_b32 v2, s{64+2*i}")
            a(f"v_mov_b32 v3, s{65+2*i}")
            a(f"buffer_store_dwordx2 v[2:3], v1, s[96:99], s100 offen offset:{8*i}")
            a("s_nop 0")


def steps_list():
    st = []
    for cb in range(4):
        for p in range(2):
            for i in range(16 - p):
                st.append((cb, p, i, 2 * i + p))
    return st


def dpp_reduce(a, regs):
    for mod in ["row_shr:1 row_mask:0xf bank_mask:0xf bound_ctrl:0",
                "row_shr:2 row_mask:0xf bank_mask:0xf bound_ctrl:0",
                "row_shr:4 row_mask:0xf bank_mask:0xf bound_ctrl:0",
                "row_shr:8 row_mask:0xf bank_mask:0xf bound_ctrl:0",
                "row_bcast:15 row_mask:0xa bank_mask:0xf",
                "row_bcast:31 row_mask:0xc bank_mask:0xf"]:
        for r in regs:
            a(f"v_add_f32_dpp v{r}, v{r}, v{r} {mod}")


def gen(a, opt):
    RX = opt.get("RX", 20)
    ST = Stamps(a, opt.get("stamps", 0))
    V_ACC = 16
    V_W = 48
    V_X = 60
    V_XA = V_X + 4 * RX
    V_WA = V_XA + 12
    NV = V_WA + 2
    a.raw(f".globl {KNAME}")
    a.raw(".p2align 8")
    a.raw(f".type {KNAME},@function")
    a.label(KNAME)
    a("s_cmp_ge_u32 s2, 256")
    a("s_cbranch_scc1 L_END")
    ST.init()
    ST.stamp(0)
    a("s_load_dwordx8 s[4:11], s[0:1], 0")
    a("s_load_dwordx8 s[12:19], s[0:1], 32")
    a("v_lshrrev_b32 v1, 6, v0")
    a("v_and_b32 v2, 63, v0")
    a("s_and_b32 s41, s2, 3")
    a("v_readfirstlane_b32 s40, v1")
    a("s_lshr_b32 s48, s2, 3")
    a("s_and_b32 s44, s48, 3")
    a("s_bfe_u32 s43, s48, 0x10002")
    a("s_lshr_b32 s42, s48, 3")
    a("s_and_b32 s49, s2, 4")
    a("s_add_u32 s42, s42, s49")
    a("s_and_b32 s45, s40, 3")
    a("s_lshl_b32 s46, s43, 3")
    a("s_add_u32 s46, s46, s42")
    a("s_lshl_b32 s47, s41, 2")
    a("s_add_u32 s47, s47, s44")
    a("s_mul_i32 s50, s43, 1024000")
    a("s_lshl_b32 s48, s44, 18")
    a("s_add_u32 s50, s50, s48")
    a("s_lshl_b32 s48, s41, 8")
    a("s_add_u32 s50, s50, s48")
    a("s_lshl_b32 s48, s45, 14")
    a("s_add_u32 s50, s50, s48")
    a("s_lshl_b32 s51, s45, 10")
    a("s_cmp_lt_u32 s45, 2")
    a("s_cselect_b32 s53, 4, 2")
    a("s_lshl_b32 s52, s53, 16")
    a("s_lshl_b32 s53, s53, 12")
    a("s_add_u32 s52, s52, s50")
    a("s_add_u32 s53, s53, s51")
    a("v_lshrrev_b32 v3, 4, v2")
    a("v_lshlrev_b32 v3, 12, v3")
    a("v_bfe_u32 v4, v2, 3, 1")
    a("v_lshl_add_u32 v3, v4, 11, v3")
    a("v_and_b32 v4, 7, v2")
    a("v_lshl_add_u32 v4, v4, 4, v3")
    a("s_lshl_b32 s48, s45, 5")
    a("v_xor_b32 v4, s48, v4")
    a("v_xor_b32 v5, 0x800, v4")
    a("s_add_u32 s48, s43, 1")
    a("s_mul_i32 s22, s48, 1024000")
    a("s_mov_b32 s23, 0x20000")
    a("s_mov_b32 s26, %d" % W_BYTES)
    a("s_mov_b32 s27, 0x20000")
    a("s_cmp_ge_u32 s40, 4")
    a("s_cbranch_scc1 L_LOADER")

    def x_piece(pl, i):
        so = (pl & 1) * 1024 + (pl >> 1) * 128
        lo = pl * PLANE
        if i < 4:
            a(f"s_add_u32 m0, s51, {lo + i*4096}")
            a(f"s_add_u32 s48, s50, {so + i*65536}")
        else:
            a(f"s_add_u32 m0, s53, {lo}")
            a(f"s_add_u32 s48, s52, {so}")
        a(f"buffer_load_dwordx4 v{4 + (i & 1)}, s[20:23], s48 offen lds")

    def finish_srds():
        a("s_mov_b32 s20, s4")
        a("s_and_b32 s21, s5, 0xffff")
        a("s_mov_b32 s24, s6")
        a("s_and_b32 s25, s7, 0xffff")

    def other_srds():
        srd(a, 28, 18, 19, EX_BYTES)
        srd(a, 32, 16, 17, 256)
        srd(a, 36, 14, 15, OUT_BYTES)

    a("s_lshl_b32 s48, s43, 2")
    a("s_add_u32 s48, s48, s44")
    a("s_lshl_b32 s48, s48, 1")
    a("s_lshl_b32 s49, s45, 4")
    a("s_add_u32 s48, s48, s49")
    a("s_lshl_b32 s49, s42, 7")
    a("s_lshl_b32 s54, s41, 17")
    a("s_add_u32 s54, s54, s49")
    a("v_lshrrev_b32 v8, 5, v2")
    a("v_add_u32 v8, s48, v8")
    a("v_and_b32 v9, 31, v2")
    a("v_lshlrev_b32 v9, 10, v9")
    a("v_add_u32 v9, s54, v9")
    for k, dst in ((0, 6), (64, 7)):
        if k:
            a(f"v_add_u32 v8, {k}, v8")
        a("v_mul_u32_u24 v10, 2115, v8")
        a("v_lshrrev_b32 v10, 16, v10")
        a("v_mul_u32_u24 v11, 31, v10")
        a("v_sub_u32 v11, v8, v11")
        a("v_lshlrev_b32 v11, 1, v11")
        a("v_subrev_u32 v12, 31, v11")
        a("v_cmp_gt_u32 vcc, 32, v11")
        a("v_lshlrev_b32 v10, 15, v10")
        a("v_add_u32 v10, v9, v10")
        a("v_cndmask_b32 v11, v12, v11, vcc")
        a(f"v_lshl_add_u32 v{dst}, v11, 19, v10")
    a("s_waitcnt lgkmcnt(0)")
    ST.stamp(1)
    finish_srds()
    for i in range(5):
        x_piece(0, i)
    if not opt.get("nopf"):
        a("buffer_load_dword v14, v6, s[24:27], 0 offen")
    other_srds()
    a("v_and_b32 v3, 15, v2")
    a("v_lshrrev_b32 v1, 4, v2")
    for d in range(3):
        a(f"v_add_u32 v4, {d}, v3")
        a("v_and_b32 v4, 7, v4")
        a("v_lshlrev_b32 v4, 1, v4")
        a("v_xor_b32 v4, v1, v4")
        a("v_lshlrev_b32 v4, 4, v4")
        a(f"v_lshl_add_u32 v{V_XA + 4*d}, v3, 10, v4")
    for d in range(3):
        for z in range(1, 4):
            a(f"v_xor_b32 v{V_XA + 4*d + z}, {z << 6}, v{V_XA + 4*d}")
    a("v_lshrrev_b32 v4, 2, v3")
    a("v_lshl_add_u32 v4, v1, 3, v4")
    a("v_lshlrev_b32 v4, 7, v4")
    a("v_lshrrev_b32 v5, 3, v3")
    a("v_and_b32 v6, 1, v1")
    a("v_lshl_or_b32 v5, v6, 1, v5")
    a("v_xor_b32 v5, s40, v5")
    a("v_lshl_add_u32 v4, v5, 5, v4")
    a("v_and_b32 v5, 3, v3")
    a("v_lshl_add_u32 v4, v5, 3, v4")
    a(f"v_add_u32 v{V_WA}, {RING_BASE}, v4")
    a(f"v_add_u32 v{V_WA+1}, {RING_BASE + 40960}, v4")
    a("s_lshl_b32 s48, s40, 2")
    a("v_add_u32 v6, s48, v1")
    a("v_lshlrev_b32 v6, 15, v6")
    a("v_lshl_add_u32 v6, v3, 4, v6")
    a("s_lshl_b32 s55, s46, 19")
    a("s_lshl_b32 s48, s41, 13")
    a("s_add_u32 s55, s55, s48")
    a("s_lshl_b32 s48, s44, 11")
    a("s_add_u32 s55, s55, s48")
    a("s_lshl_b32 s56, s46, 4")
    a("s_add_u32 s56, s56, s47")
    a("s_mov_b32 s59, s56")
    a("s_lshl_b32 s56, s56, 15")
    a("s_lshl_b32 s48, s40, 13")
    a("s_add_u32 s57, s56, s48")
    a("s_add_u32 s58, s57, 4096")
    a("v_lshlrev_b32 v5, 4, v2")
    for r in range(8, 12):
        a(f"v_mov_b32 v{r}, -1")
    a("v_mov_b32 v12, 1")
    a("v_mov_b32 v13, 0")
    a("s_lshl_b32 s60, s46, 4")
    a("s_waitcnt vmcnt(%d)" % (0 if opt.get("nopf") else 1))
    ST.stamp(2)
    a("s_barrier")
    ST.stamp(3)

    st = steps_list()
    NS = len(st)
    frags = []
    pass_off = {}
    for cb in range(4):
        for p in range(2):
            pass_off[(cb, p)] = len(frags)
            for f in range(16 - p + 7):
                frags.append((cb, p, f))
    lds_q = []
    plane_avail = {0: 0, 1: 3, 2: opt.get("av2", 12), 3: opt.get("av3", 14)}
    bars_done = [0]

    def plane_of(F):
        cb, p, f = frags[F]
        return (cb >> 1) * 2 + p

    def issue_x(F):
        cb, p, f = frags[F]
        d = f >> 3
        z = (f & 1) * 2 + (cb & 1)
        r = V_X + 4 * (F % RX)
        assert bars_done[0] >= plane_avail[plane_of(F)]
        a(f"ds_read_b128 {vr(r,4)}, v{V_XA + 4*d + z} offset:{plane_of(F)*PLANE + (f>>1)*256}")
        lds_q.append(("x", F))

    def issue_w(t, h):
        u = t % RING_UNITS
        base = V_WA + (1 if u >= 10 else 0)
        off = (u % 10) * 4096 + h * 512
        r = V_W + 4 * (t % 3) + 2 * h
        assert bars_done[0] >= t // 4
        a(f"ds_read_b64_tr_b16 {vr(r,2)}, v{base} offset:{off}")
        lds_q.append(("w", t, h))

    def wait_for(tags):
        idx = max(lds_q.index(tg) for tg in tags)
        n = len(lds_q) - 1 - idx
        assert n <= 15, n
        a(f"s_waitcnt lgkmcnt({n})")

    nx = 0
    issue_w(0, 0); issue_w(0, 1)
    for F in range(8):
        issue_x(F); nx += 1
    issue_w(1, 0); issue_w(1, 1)
    for F in range(8, 10):
        issue_x(F); nx += 1

    T_PF2 = opt.get("tpf2", 10)
    T_PRE = opt.get("tpre", 12)
    T_PREDONE = 44
    T_FLAG = 47
    T_CHK_LOAD = 100
    T_CHK = 116
    for t in range(NS):
        cb, p, i, tap = st[t]
        off = pass_off[(cb, p)]
        fmin = off + i
        need = [("w", t, 0), ("w", t, 1)] + [("x", off + i + j) for j in range(8)]
        if t % 16 == 8 and t < 112:
            ST.stamp(4 + t // 16)
        side = []
        nb = bars_done[0]
        if (t + 2) % 4 == 0 and t + 2 < NS:
            side.append(("bar",))
            nb += 1
        if t + 2 < NS:
            side.append(("w", t + 2, 0))
            side.append(("w", t + 2, 1))
        cnt = 0
        tmp = nx
        while cnt < 2 and tmp < len(frags) and tmp - fmin < RX and nb >= plane_avail[plane_of(tmp)]:
            side.append(("x", tmp))
            tmp += 1
            cnt += 1
        if t == T_PF2 and not opt.get("nopf"):
            side.append(("raw", ["buffer_load_dword v15, v7, s[24:27], 0 offen"]))
        if T_PRE <= t < T_PRE + 8:
            k = t - T_PRE
            side.append(("raw", [f"buffer_store_dwordx4 v[8:11], v5, s[28:31], s{57 + (k >> 2)} offen offset:{(k & 3)*1024} sc1"]))
        if t == T_PREDONE:
            side.append(("raw", ["s_waitcnt vmcnt(0)"]))
        if t == T_FLAG:
            side.append(("raw", ["s_cmp_lg_u32 s40, 0", "s_cbranch_scc1 L_NOFLAG",
                                 "buffer_store_byte v12, v13, s[32:35], s59 offen sc1", "L_NOFLAG:"]))
        if t == T_CHK_LOAD:
            side.append(("raw", ["buffer_load_dwordx4 v[8:11], v13, s[32:35], s60 offen sc1"]))
        if t == T_CHK:
            side.append(("raw", ["s_waitcnt vmcnt(0)", "v_and_b32 v8, v8, v9", "v_and_b32 v10, v10, v11"]))
            side.append(("raw", ["v_and_b32 v8, v8, v10"]))
            side.append(("raw", ["v_readfirstlane_b32 s61, v8"]))
        wait_for(need)
        for j in range(8):
            acc = V_ACC + 4 * j
            xr = V_X + 4 * ((off + i + j) % RX)
            wr = V_W + 4 * (t % 3)
            c = "0" if t == 0 else vr(acc, 4)
            a(f"v_mfma_f32_16x16x32_bf16 {vr(acc,4)}, {vr(wr,4)}, {vr(xr,4)}, {c}")
            if side:
                s = side.pop(0)
                if s[0] == "bar":
                    a("s_barrier"); bars_done[0] += 1
                elif s[0] == "w":
                    issue_w(s[1], s[2])
                elif s[0] == "x":
                    issue_x(s[1]); nx += 1
                else:
                    for ln in s[1]:
                        if ln.endswith(":"):
                            a.label(ln[:-1])
                        else:
                            a(ln)
        assert not side, (t, side)
    ST.stamp(12)
    a("s_cmp_eq_u32 s61, 0x01010101")
    a("s_cbranch_scc1 L_PUB")
    a(f"s_mov_b32 s62, {SPIN_LIMIT}")
    a.label("L_CHKSPIN")
    a("s_sleep 4")
    a("buffer_load_dwordx4 v[8:11], v13, s[32:35], s60 offen sc1")
    a("s_waitcnt vmcnt(0)")
    a("v_and_b32 v8, v8, v9")
    a("v_and_b32 v10, v10, v11")
    a("v_and_b32 v8, v8, v10")
    a("s_nop 0")
    a("v_readfirstlane_b32 s61, v8")
    a("s_sub_u32 s62, s62, 1")
    a("s_cmp_eq_u32 s62, 0")
    a("s_cbranch_scc1 L_PUB")
    a("s_cmp_eq_u32 s61, 0x01010101")
    a("s_cbranch_scc0 L_CHKSPIN")
    a.label("L_PUB")
    a("s_nop 3")
    for j in range(8):
        for r in range(4):
            a(f"v_min_u32 v{V_ACC + 4*j + r}, -2, v{V_ACC + 4*j + r}")
        a(f"buffer_store_dwordx4 {vr(V_ACC + 4*j, 4)}, v6, s[28:31], s55 offen offset:{j*256} sc1")
    ST.stamp(13)
    a("s_branch L_TAIL")

    a.label("L_LOADER")
    a("v_lshrrev_b32 v8, 3, v2")
    a("s_lshl_b32 s48, s45, 3")
    a("v_add_u32 v8, s48, v8")
    a("v_lshlrev_b32 v8, 10, v8")
    a("v_bfe_u32 v9, v2, 4, 1")
    a("s_and_b32 s48, s45, 1")
    a("s_lshl_b32 s48, s48, 1")
    a("v_or_b32 v9, s48, v9")
    a("v_lshlrev_b32 v9, 1, v9")
    a("v_and_b32 v10, 7, v2")
    a("v_xor_b32 v9, v9, v10")
    a("v_lshl_add_u32 v8, v9, 4, v8")
    a("s_lshl_b32 s48, s42, 7")
    a("s_lshl_b32 s49, s41, 17")
    a("s_add_u32 s48, s48, s49")
    a("v_add_u32 v8, s48, v8")
    a(f"s_add_u32 s54, s51, {RING_BASE}")
    a("s_lshl_b32 s56, s46, 4")
    a("s_add_u32 s56, s56, s47")
    a("s_lshl_b32 s56, s56, 15")
    a("s_waitcnt lgkmcnt(0)")
    ST.stamp(1)
    finish_srds()
    vq = []

    def w_unit(u):
        cb, p, i, tap = st[u]
        a(f"s_add_u32 m0, s54, {(u % RING_UNITS) * 4096}")
        a(f"s_mov_b32 s48, {tap * 524288 + cb * 32768}")
        if not (opt.get("nodma") and u >= 20):
            a("buffer_load_dwordx4 v8, s[24:27], s48 offen lds")
        vq.append(("w", u // 4))

    def w_slot(n):
        for k in range(4):
            w_unit(4 * n + k)

    def lx(pl, i):
        x_piece(pl, i)
        vq.append(("x", pl))

    def lwait(tags):
        idx = max(k for k, tg in enumerate(vq) if tg in tags)
        n = len(vq) - 1 - idx
        assert n <= 63
        a(f"s_waitcnt vmcnt({n})")

    w_slot(0); w_slot(1)
    other_srds()
    ST.stamp(2)
    lwait([("w", 0)])
    ST.stamp(3)
    a("s_barrier")
    ST.stamp(4)
    ST.cstamp(8)
    xq = [(2, i) for i in range(5)] + [(3, i) for i in range(5)]
    for n in range(30):
        if n == 0:
            w_slot(2)
            for i in range(5):
                lx(1, i)
        elif n == 1:
            w_slot(3); w_slot(4)
        else:
            if n + 3 <= 30:
                w_slot(n + 3)
            if xq:
                lx(*xq.pop(0))
        need = [("w", n + 1)] + [("x", pl) for pl in (1, 2, 3) if plane_avail[pl] <= n + 1]
        for pl in (1, 2, 3):
            if plane_avail[pl] <= n + 1:
                assert sum(1 for tg in vq if tg == ("x", pl)) == 5, (n, pl)
        lwait(need)
        a("s_barrier")
    ST.stamp(5)
    ST.cstamp(9)
    if ST.on:
        a("s_getreg_b32 s84, hwreg(HW_REG_XCC_ID)")
        a("s_add_u32 s84, s84, 1000")

    a.label("L_TAIL")
    a("s_lshl_b32 s48, s42, 7")
    a("s_lshl_b32 s49, s47, 3")
    a("s_add_u32 s48, s48, s49")
    a("s_load_dwordx2 s[4:5], s[8:9], s48")
    a("s_load_dwordx2 s[6:7], s[10:11], s48")
    a("s_load_dwordx2 s[20:21], s[12:13], s48")
    a("v_lshlrev_b32 v1, 4, v0")
    a("s_add_u32 s57, s56, 8192")
    a("s_add_u32 s58, s56, 16384")
    a("s_add_u32 s59, s56, 24576")
    a("v_lshrrev_b32 v2, 7, v0")
    a("v_lshlrev_b32 v2, 7, v2")
    a("v_and_b32 v3, 15, v0")
    a("v_lshl_add_u32 v2, v3, 3, v2")
    a("v_bfe_u32 v3, v0, 4, 3")
    a("v_add_u32 v2, v2, v3")
    a("s_movk_i32 s49, 485")
    a("v_cmp_gt_u32 s[24:25], s49, v2")
    a("s_mul_i32 s49, s43, 485")
    a("v_add_u32 v2, s49, v2")
    a("v_lshlrev_b32 v2, 10, v2")
    a("v_add_u32 v2, s48, v2")
    a("v_lshrrev_b32 v3, 6, v0")
    a("v_lshlrev_b32 v3, 4, v3")
    a("v_mov_b32 v4, 0")
    a("s_barrier")
    ST.stamp(14)
    D = 96
    a("s_mov_b32 s62, 15")
    a(f"s_mov_b32 s63, {SPIN_LIMIT}")
    a.label("L_POLL")
    for s in range(4):
        a(f"s_bitcmp1_b32 s62, {s}")
        a(f"s_cbranch_scc0 L_PL{s}")
        a(f"buffer_load_dwordx4 {vr(D+4*s,4)}, v1, s[28:31], s{56+s} offen sc1")
        a.label(f"L_PL{s}")
    a("s_waitcnt vmcnt(0)")
    for s in range(4):
        a(f"v_max3_u32 v{8+s}, v{D+4*s}, v{D+4*s+1}, v{D+4*s+2}")
    for s in range(4):
        a(f"v_max_u32 v{8+s}, v{8+s}, v{D+4*s+3}")
    a("s_mov_b32 s62, 0")
    for s in range(4):
        a(f"v_cmp_eq_u32 vcc, -1, v{8+s}")
        a("s_cmp_lg_u64 vcc, 0")
        a(f"s_cselect_b32 s49, {1 << s}, 0")
        a("s_or_b32 s62, s62, s49")
    a("s_cmp_eq_u32 s62, 0")
    a("s_cbranch_scc1 L_GOT")
    a("s_sleep %d" % opt.get("psleep", 2))
    a("s_sub_u32 s63, s63, 1")
    a("s_cmp_lg_u32 s63, 0")
    a("s_cbranch_scc1 L_POLL")
    a.label("L_GOT")
    ST.stamp(15)
    a("s_waitcnt lgkmcnt(0)")
    for src, dst in [(4, 48), (6, 52), (20, 56)]:
        a(f"s_lshl_b32 s{dst}, s{src}, 16")
        a(f"s_and_b32 s{dst+1}, s{src}, 0xffff0000")
        a(f"s_lshl_b32 s{dst+2}, s{src+1}, 16")
        a(f"s_and_b32 s{dst+3}, s{src+1}, 0xffff0000")
    Y = 16
    for r in range(4):
        a(f"v_add_f32 v{Y+r}, v{D+r}, v{D+4+r}")
    for r in range(4):
        a(f"v_add_f32 v{D+8+r}, v{D+8+r}, v{D+12+r}")
    for r in range(4):
        a(f"v_add_f32 v{Y+r}, v{Y+r}, v{D+8+r}")
    for r in range(4):
        a(f"v_add_f32 v{Y+r}, s{48+r}, v{Y+r}")
    for r in range(4):
        a(f"v_cndmask_b32 v{8+r}, 0, v{Y+r}, s[24:25]")
    a("s_nop 1")
    dpp_reduce(a, [8, 9, 10, 11])
    a("s_mov_b32 exec_lo, 0")
    a("s_mov_b32 exec_hi, 0x80000000")
    a("ds_write_b128 v3, v[8:11]")
    a("s_mov_b64 exec, -1")
    a("s_waitcnt lgkmcnt(0)")
    a("s_barrier")
    G = 32

    def gather(base):
        for w in range(8):
            a(f"ds_read_b128 v[{G+4*w}:{G+3+4*w}], v4 offset:{base + 16*w}")
        a("s_waitcnt lgkmcnt(0)")
        for r in range(4):
            for k in range(4):
                a(f"v_add_f32 v{G+8*k+r}, v{G+8*k+r}, v{G+8*k+4+r}")
        for r in range(4):
            a(f"v_add_f32 v{G+r}, v{G+r}, v{G+8+r}")
            a(f"v_add_f32 v{G+16+r}, v{G+16+r}, v{G+24+r}")
        for r in range(4):
            a(f"v_add_f32 v{G+r}, v{G+r}, v{G+16+r}")

    gather(0)
    a(f"s_mov_b32 s60, {f2u(1.0/485.0):#x}")
    for r in range(4):
        a(f"v_mul_f32 v{G+r}, s60, v{G+r}")
    for r in range(4):
        a(f"v_sub_f32 v{Y+r}, v{Y+r}, v{G+r}")
    for r in range(4):
        a(f"v_mul_f32 v{8+r}, v{Y+r}, v{Y+r}")
    for r in range(4):
        a(f"v_cndmask_b32 v{8+r}, 0, v{8+r}, s[24:25]")
    a("s_nop 1")
    dpp_reduce(a, [8, 9, 10, 11])
    a("s_mov_b32 exec_lo, 0")
    a("s_mov_b32 exec_hi, 0x80000000")
    a("ds_write_b128 v3, v[8:11] offset:128")
    a("s_mov_b64 exec, -1")
    a("s_waitcnt lgkmcnt(0)")
    a("s_barrier")
    gather(128)
    a(f"v_mov_b32 v12, {f2u(1e-5):#x}")
    for r in range(4):
        a(f"v_fma_f32 v{G+r}, v{G+r}, s60, v12")
    for r in range(4):
        a(f"v_rsq_f32 v{G+r}, v{G+r}")
    a("s_nop 0")
    for r in range(4):
        a(f"v_mul_f32 v{G+r}, s{52+r}, v{G+r}")
    for r in range(4):
        a(f"v_mov_b32 v{G+4+r}, s{56+r}")
    for r in range(4):
        a(f"v_fma_f32 v{Y+r}, v{Y+r}, v{G+r}, v{G+4+r}")
    c1 = -2.0 * 1.4426950408889634 * 0.7978845608028654
    c2 = c1 * 0.044715
    a(f"s_mov_b32 s61, {f2u(c2):#x}")
    a(f"v_mov_b32 v12, {f2u(c1):#x}")
    for r in range(4):
        a(f"v_mul_f32 v{8+r}, v{Y+r}, v{Y+r}")
    for r in range(4):
        a(f"v_fma_f32 v{8+r}, v{8+r}, s61, v12")
    for r in range(4):
        a(f"v_mul_f32 v{8+r}, v{8+r}, v{Y+r}")
    for r in range(4):
        a(f"v_exp_f32 v{8+r}, v{8+r}")
    a("s_nop 0")
    for r in range(4):
        a(f"v_add_f32 v{8+r}, 1.0, v{8+r}")
    for r in range(4):
        a(f"v_rcp_f32 v{8+r}, v{8+r}")
    a("s_nop 0")
    for r in range(4):
        a(f"v_mul_f32 v{Y+r}, v{Y+r}, v{8+r}")
    a(f"v_cvt_pk_bf16_f32 v8, v{Y}, v{Y+1}")
    a(f"v_cvt_pk_bf16_f32 v9, v{Y+2}, v{Y+3}")
    a("s_and_saveexec_b64 s[26:27], s[24:25]")
    a("s_cbranch_execz L_FIN")
    a("buffer_store_dwordx2 v[8:9], v2, s[36:39], 0 offen")
    a.label("L_FIN")
    if ST.on:
        a("s_mov_b64 exec, -1")
        a("s_cmp_ge_u32 s40, 4")
        a("s_cbranch_scc1 L_ST1")
        ST.stamp(11)
        a("s_branch L_ST2")
        a.label("L_ST1")
        ST.stamp(6)
        a("s_waitcnt vmcnt(0)")
        ST.stamp(7)
        a.label("L_ST2")
        ST.dump(18, 40)
    a.label("L_END")
    a("s_endpgm")
    return NV


def kd(name, nv, ns):
    acc = (nv + 3) // 4 * 4
    return f""".p2align 6
.amdhsa_kernel {name}
  .amdhsa_next_free_vgpr {nv}
  .amdhsa_next_free_sgpr {ns}
  .amdhsa_accum_offset {acc}
  .amdhsa_group_segment_fixed_size 0
  .amdhsa_kernarg_size 64
  .amdhsa_user_sgpr_count 2
  .amdhsa_user_sgpr_kernarg_segment_ptr 1
  .amdhsa_system_sgpr_workgroup_id_x 1
  .amdhsa_float_denorm_mode_32 3
.end_amdhsa_kernel
"""


def main():
    opt = {}
    for arg in sys.argv[2:]:
        k, v = arg.split("=")
        opt[k] = int(v)
    a = Asm()
    nv = gen(a, opt)
    out = HEADER
    out += f"; @launch grid=(256,1,1) block=(512,1,1) lds={LDS_BYTES}\n"
    out += '.amdgcn_target "amdgcn-amd-amdhsa--gfx950"\n.text\n'
    out += a.text()
    out += '.section .rodata,"a"\n'
    out += kd(KNAME, nv, 102 if opt.get("stamps") else 64)
    open(sys.argv[1], "w").write(out)


if __name__ == "__main__":
    main()
```

```python
import sys, struct
from gen2 import Asm, vr, srd, Stamps, steps_list, kd, HEADER, KNAME, f2u

W_BYTES = 31 * 512 * 512 * 2
OUT_BYTES = 2 * 485 * 512 * 2
EX_BYTES = 256 * 32768
FLAG_OFF = EX_BYTES
WS_BYTES = EX_BYTES + 4096
PLANE = 18432
XLDS = 4 * PLANE
RING_UNITS = 20
RING_BASE = XLDS
MODE_LDS = XLDS + RING_UNITS * 4096
LDS_BYTES = MODE_LDS + 256
SPIN_LIMIT = 40000


def gen(a, opt):
    RX = opt.get("RX", 20)
    ST = Stamps(a, opt.get("stamps", 0))
    V_ACC = 16
    V_W = 48
    V_X = 60
    V_XA = V_X + 4 * RX
    V_WA = V_XA + 12
    NV = V_WA + 2
    a.raw(f".globl {KNAME}")
    a.raw(".p2align 8")
    a.raw(f".type {KNAME},@function")
    a.label(KNAME)
    a("s_cmp_ge_u32 s2, 256")
    a("s_cbranch_scc1 L_END")
    ST.init()
    ST.stamp(0)
    a("s_load_dwordx8 s[4:11], s[0:1], 0")
    a("s_load_dwordx8 s[12:19], s[0:1], 32")
    a("v_lshrrev_b32 v1, 6, v0")
    a("v_and_b32 v2, 63, v0")
    if opt.get("map", 0) == 0:
        a("s_and_b32 s42, s2, 7")
        a("v_readfirstlane_b32 s40, v1")
        a("s_bfe_u32 s47, s2, 0x40003")
        a("s_lshr_b32 s43, s2, 7")
        a("s_and_b32 s41, s47, 3")
        a("s_lshr_b32 s44, s47, 2")
    else:
        a("s_and_b32 s41, s2, 3")
        a("v_readfirstlane_b32 s40, v1")
        a("s_lshr_b32 s48, s2, 3")
        a("s_and_b32 s44, s48, 3")
        a("s_bfe_u32 s43, s48, 0x10002")
        a("s_lshr_b32 s42, s48, 3")
        a("s_and_b32 s49, s2, 4")
        a("s_add_u32 s42, s42, s49")
        a("s_lshl_b32 s47, s44, 2")
        a("s_add_u32 s47, s47, s41")
    a("s_and_b32 s45, s40, 3")
    a("s_lshl_b32 s46, s43, 3")
    a("s_add_u32 s46, s46, s42")
    a("s_mul_i32 s50, s43, 1024000")
    a("s_lshl_b32 s48, s44, 18")
    a("s_add_u32 s50, s50, s48")
    a("s_lshl_b32 s48, s41, 8")
    a("s_add_u32 s50, s50, s48")
    a("s_lshl_b32 s48, s45, 14")
    a("s_add_u32 s50, s50, s48")
    a("s_lshl_b32 s51, s45, 10")
    a("s_cmp_lt_u32 s45, 2")
    a("s_cselect_b32 s53, 4, 2")
    a("s_lshl_b32 s52, s53, 16")
    a("s_lshl_b32 s53, s53, 12")
    a("s_add_u32 s52, s52, s50")
    a("s_add_u32 s53, s53, s51")
    a("v_lshrrev_b32 v3, 4, v2")
    a("v_lshlrev_b32 v3, 12, v3")
    a("v_bfe_u32 v4, v2, 3, 1")
    a("v_lshl_add_u32 v3, v4, 11, v3")
    a("v_and_b32 v4, 7, v2")
    a("v_lshl_add_u32 v4, v4, 4, v3")
    a("s_lshl_b32 s48, s45, 5")
    a("v_xor_b32 v4, s48, v4")
    a("v_xor_b32 v5, 0x800, v4")
    a("s_add_u32 s48, s43, 1")
    a("s_mul_i32 s22, s48, 1024000")
    a("s_mov_b32 s23, 0x20000")
    a("s_mov_b32 s26, %d" % W_BYTES)
    a("s_mov_b32 s27, 0x20000")
    a("s_lshl_b32 s56, s46, 4")
    a("s_add_u32 s56, s56, s47")
    a("s_mov_b32 s59, s56")
    a("s_lshl_b32 s56, s56, 15")
    a("s_cmp_ge_u32 s40, 4")
    a("s_cbranch_scc1 L_NOTCOMPUTE")

    def x_piece(pl, i):
        so = (pl & 1) * 1024 + (pl >> 1) * 128
        lo = pl * PLANE
        if i < 4:
            a(f"s_add_u32 m0, s51, {lo + i*4096}")
            a(f"s_add_u32 s48, s50, {so + i*65536}")
        else:
            a(f"s_add_u32 m0, s53, {lo}")
            a(f"s_add_u32 s48, s52, {so}")
        a(f"buffer_load_dwordx4 v{4 + (i & 1)}, s[20:23], s48 offen lds")

    def finish_srds():
        a("s_lshl_b32 s48, s42, 7")
        a("s_lshl_b32 s49, s47, 3")
        a("s_add_u32 s48, s48, s49")
        a("s_load_dwordx2 s[10:11], s[10:11], s48")
        a("s_load_dwordx2 s[12:13], s[12:13], s48")
        a("s_mov_b32 s20, s4")
        a("s_and_b32 s21, s5, 0xffff")
        a("s_mov_b32 s24, s6")
        a("s_and_b32 s25, s7, 0xffff")

    def other_srds():
        srd(a, 28, 18, 19, WS_BYTES)
        srd(a, 32, 16, 17, 256)
        srd(a, 36, 14, 15, OUT_BYTES)

    a("v_and_b32 v3, 15, v2")
    a("v_lshrrev_b32 v1, 4, v2")
    a("s_lshl_b32 s48, s42, 7")
    a("s_lshl_b32 s49, s40, 5")
    a("s_add_u32 s48, s48, s49")
    a("v_lshl_add_u32 v7, v1, 3, s48")
    a("s_cmp_eq_u32 s41, 0")
    a("s_cselect_b32 s54, -1, 0")
    for d in range(3):
        a(f"v_add_u32 v6, {d}, v3")
        a("v_and_b32 v6, 7, v6")
        a("v_lshlrev_b32 v6, 1, v6")
        a("v_xor_b32 v6, v1, v6")
        a("v_lshlrev_b32 v6, 4, v6")
        a(f"v_lshl_add_u32 v{V_XA + 4*d}, v3, 10, v6")
    a("s_waitcnt lgkmcnt(0)")
    ST.stamp(1)
    finish_srds()
    for i in range(5):
        x_piece(0, i)
    a("global_load_dwordx2 v[10:11], v7, s[8:9]")
    other_srds()
    for d in range(3):
        for z in range(1, 4):
            a(f"v_xor_b32 v{V_XA + 4*d + z}, {z << 6}, v{V_XA + 4*d}")
    a("v_lshrrev_b32 v4, 2, v3")
    a("v_lshl_add_u32 v4, v1, 3, v4")
    a("v_lshlrev_b32 v4, 7, v4")
    a("v_lshrrev_b32 v5, 3, v3")
    a("v_and_b32 v6, 1, v1")
    a("v_lshl_or_b32 v5, v6, 1, v5")
    a("v_xor_b32 v5, s40, v5")
    a("v_lshl_add_u32 v4, v5, 5, v4")
    a("v_and_b32 v5, 3, v3")
    a("v_lshl_add_u32 v4, v5, 3, v4")
    a(f"v_add_u32 v{V_WA}, {RING_BASE}, v4")
    a(f"v_add_u32 v{V_WA+1}, {RING_BASE + 40960}, v4")
    a("s_lshl_b32 s48, s40, 2")
    a("v_add_u32 v6, s48, v1")
    a("v_lshlrev_b32 v6, 15, v6")
    a("v_lshl_add_u32 v6, v3, 4, v6")
    a("s_lshl_b32 s55, s46, 19")
    a("s_lshl_b32 s48, s41, 13")
    a("s_add_u32 s55, s55, s48")
    a("s_lshl_b32 s48, s44, 11")
    a("s_add_u32 s55, s55, s48")
    a("s_lshl_b32 s57, s46, 8")
    a("s_lshl_b32 s48, s40, 6")
    a("s_add_u32 s57, s57, s48")
    a("s_lshl_b32 s48, s47, 2")
    a("s_add_u32 s57, s57, s48")
    a(f"s_add_u32 s57, s57, {FLAG_OFF}")
    a("v_mov_b32 v8, 1")
    a("v_mov_b32 v9, 0")
    a(f"v_mov_b32 v7, {MODE_LDS}")
    a("s_waitcnt vmcnt(0)")
    ST.stamp(2)
    a("v_and_b32 v10, s54, v10")
    a("v_and_b32 v11, s54, v11")
    a("v_lshlrev_b32 v12, 16, v10")
    a("v_and_b32 v13, 0xffff0000, v10")
    a("v_lshlrev_b32 v14, 16, v11")
    a("v_and_b32 v15, 0xffff0000, v11")
    a("s_barrier")
    ST.stamp(3)

    st = steps_list()
    NS = len(st)
    frags = []
    pass_off = {}
    for cb in range(4):
        for p in range(2):
            pass_off[(cb, p)] = len(frags)
            for f in range(16 - p + 7):
                frags.append((cb, p, f))
    lds_q = []
    plane_avail = {0: 0, 1: 3, 2: opt.get("av2", 12), 3: opt.get("av3", 14)}
    bars_done = [0]
    B_MODE = 24

    def plane_of(F):
        cb, p, f = frags[F]
        return (cb >> 1) * 2 + p

    def issue_x(F):
        cb, p, f = frags[F]
        d = f >> 3
        z = (f & 1) * 2 + (cb & 1)
        r = V_X + 4 * (F % RX)
        assert bars_done[0] >= plane_avail[plane_of(F)]
        a(f"ds_read_b128 {vr(r,4)}, v{V_XA + 4*d + z} offset:{plane_of(F)*PLANE + (f>>1)*256}")
        lds_q.append(("x", F))

    def issue_w(t, h):
        u = t % RING_UNITS
        base = V_WA + (1 if u >= 10 else 0)
        off = (u % 10) * 4096 + h * 512
        r = V_W + 4 * (t % 3) + 2 * h
        assert bars_done[0] >= t // 4
        a(f"ds_read_b64_tr_b16 {vr(r,2)}, v{base} offset:{off}")
        lds_q.append(("w", t, h))

    def wait_for(tags):
        idx = max(lds_q.index(tg) for tg in tags)
        n = len(lds_q) - 1 - idx
        assert n <= 15, n
        a(f"s_waitcnt lgkmcnt({n})")

    nx = 0
    issue_w(0, 0); issue_w(0, 1)
    for F in range(8):
        issue_x(F); nx += 1
    issue_w(1, 0); issue_w(1, 1)
    for F in range(8, 10):
        issue_x(F); nx += 1

    T_MODE = 4 * B_MODE + 1
    for t in range(NS):
        cb, p, i, tap = st[t]
        off = pass_off[(cb, p)]
        fmin = off + i
        need = [("w", t, 0), ("w", t, 1)] + [("x", off + i + j) for j in range(8)]
        if t == T_MODE + 3:
            need.append(("mode",))
        if t % 16 == 8 and t < 112:
            ST.stamp(4 + t // 16)
        side = []
        nb = bars_done[0]
        if (t + 2) % 4 == 0 and t + 2 < NS:
            side.append(("bar",))
            nb += 1
        if t + 2 < NS:
            side.append(("w", t + 2, 0))
            side.append(("w", t + 2, 1))
        cnt = 0
        tmp = nx
        while cnt < 2 and tmp < len(frags) and tmp - fmin < RX and nb >= plane_avail[plane_of(tmp)]:
            side.append(("x", tmp))
            tmp += 1
            cnt += 1
        if t == T_MODE:
            assert bars_done[0] >= B_MODE
            side.append(("mode",))
        if t == T_MODE + 3:
            side.append(("raw", ["v_readfirstlane_b32 s61, v10"]))
        wait_for(need)
        for j in range(8):
            acc = V_ACC + 4 * j
            xr = V_X + 4 * ((off + i + j) % RX)
            wr = V_W + 4 * (t % 3)
            c = "v[12:15]" if t == 0 else vr(acc, 4)
            a(f"v_mfma_f32_16x16x32_bf16 {vr(acc,4)}, {vr(wr,4)}, {vr(xr,4)}, {c}")
            if side:
                s = side.pop(0)
                if s[0] == "bar":
                    a("s_barrier"); bars_done[0] += 1
                elif s[0] == "w":
                    issue_w(s[1], s[2])
                elif s[0] == "x":
                    issue_x(s[1]); nx += 1
                elif s[0] == "mode":
                    a("ds_read_b32 v10, v7")
                    lds_q.append(("mode",))
                else:
                    for ln in s[1]:
                        a(ln)
        assert not side, (t, side)
    ST.stamp(12)
    a("s_cmp_eq_u32 s61, 1")
    a("s_cbranch_scc1 L_PUBFAST")
    for j in range(8):
        a(f"buffer_store_dwordx4 {vr(V_ACC + 4*j, 4)}, v6, s[28:31], s55 offen offset:{j*256} sc1")
    ST.stamp(13)
    a("s_waitcnt vmcnt(0)")
    a("buffer_store_dword v8, v9, s[28:31], s57 offen sc1")
    a("s_branch L_TAIL")
    a.label("L_PUBFAST")
    for j in range(8):
        a(f"buffer_store_dwordx4 {vr(V_ACC + 4*j, 4)}, v6, s[28:31], s55 offen offset:{j*256}")
    ST.stamp(13)
    a("s_waitcnt vmcnt(0)")
    a("buffer_store_dword v8, v9, s[28:31], s57 offen")
    if opt.get("wbl2"):
        a("s_cmp_lg_u32 s40, 0")
        a("s_cbranch_scc1 L_TAIL")
        a("buffer_wbl2 sc1")
    a("s_branch L_TAIL")

    a.label("L_NOTCOMPUTE")
    a("s_cmp_eq_u32 s40, 8")
    a("s_cbranch_scc0 L_LOADER")

    a("s_lshl_b32 s48, s43, 2")
    a("s_add_u32 s48, s48, s44")
    a("s_lshl_b32 s48, s48, 1")
    a("s_lshl_b32 s49, s42, 7")
    a("s_lshl_b32 s54, s41, 17")
    a("s_add_u32 s54, s54, s49")
    a("v_lshrrev_b32 v8, 5, v2")
    a("v_add_u32 v8, s48, v8")
    a("v_and_b32 v9, 31, v2")
    a("v_lshlrev_b32 v9, 10, v9")
    a("v_add_u32 v9, s54, v9")

    def pf_addr(kk):
        a(f"v_add_u32 v13, {16*kk}, v8")
        a("v_mul_u32_u24 v10, 2115, v13")
        a("v_lshrrev_b32 v10, 16, v10")
        a("v_mul_u32_u24 v11, 31, v10")
        a("v_sub_u32 v11, v13, v11")
        a("v_lshlrev_b32 v11, 1, v11")
        a("v_subrev_u32 v12, 31, v11")
        a("v_cmp_gt_u32 vcc, 32, v11")
        a("v_lshlrev_b32 v10, 15, v10")
        a("v_add_u32 v10, v9, v10")
        a("v_cndmask_b32 v11, v12, v11, vcc")
        a(f"v_lshl_add_u32 v{16+kk}, v11, 19, v10")

    pf_addr(0)
    pf_addr(1)
    a("v_and_b32 v6, 3, v2")
    a("v_lshlrev_b32 v6, 6, v6")
    a("s_lshl_b32 s57, s46, 8")
    a("s_lshl_b32 s48, s47, 2")
    a("s_add_u32 s57, s57, s48")
    a(f"s_add_u32 s57, s57, {FLAG_OFF}")
    a("v_mov_b32 v7, 0")
    for k in range(8):
        a(f"v_xor_b32 v{48+k}, {((k & 4) << 9) | ((k & 3) << 5)}, v4")
    a("s_getreg_b32 s48, hwreg(HW_REG_XCC_ID, 0, 4)")
    a("s_or_b32 s48, s48, 0x10")
    a("v_mov_b32 v5, s48")
    a("s_lshl_b32 s60, s46, 4")
    a("s_waitcnt lgkmcnt(0)")
    finish_srds()
    hq = []

    def pf(kk):
        if opt.get("nopf"):
            return
        a(f"buffer_load_dword v{32+kk}, v{16+kk}, s[24:27], 0 offen"); hq.append("pf")

    def hx(pl, u):
        so = (pl & 1) * 1024 + (pl >> 1) * 128 + u * 16384
        a(f"s_mov_b32 m0, {pl * PLANE + u * 1024}")
        a(f"s_add_u32 s48, s50, {so}")
        a(f"buffer_load_dwordx4 v{48 + (u & 7)}, s[20:23], s48 offen lds")
        hq.append(("x", pl))

    def hwait(tag):
        idx = max(k for k, tg in enumerate(hq) if tg == tag)
        n = len(hq) - 1 - idx
        assert n <= 63
        a(f"s_waitcnt vmcnt({n})")

    lead = opt.get("pflead", 8)
    pf_at = {kk: max(0, 4 * kk - lead) for kk in range(2, 8)}
    pf(0); pf(1)
    for u in range(18):
        hx(1, u)
    other_srds()
    a("buffer_store_dword v7, v6, s[28:31], s57 offen sc1"); hq.append("reset")
    for kk in range(2, 8):
        pf_addr(kk)
    a("s_barrier")
    xq = [(2, u) for u in range(18)] + [(3, u) for u in range(18)]
    for n in range(30):
        for kk in range(2, 8):
            if pf_at[kk] == n:
                pf(kk)
        if n >= opt.get("xstart", 3):
            for _ in range(opt.get("xper", 6)):
                if xq:
                    hx(*xq.pop(0))
        if n == 3:
            hwait("reset")
            a("buffer_store_byte v5, v7, s[32:35], s59 offen sc1"); hq.append("xcc")
        if n == B_MODE - 8:
            a("buffer_load_dwordx4 v[44:47], v7, s[32:35], s60 offen sc1"); hq.append("chk")
        if n == B_MODE - 4:
            hwait("chk")
            a(f"s_mov_b32 s62, {SPIN_LIMIT}")
            a.label("L_HCHK")
            a("v_and_b32 v10, v44, v45")
            a("v_and_b32 v11, v46, v47")
            a("v_and_b32 v10, v10, v11")
            a("v_or_b32 v11, v44, v45")
            a("v_or3_b32 v11, v11, v46, v47")
            a("s_nop 0")
            a("v_readfirstlane_b32 s48, v10")
            a("v_readfirstlane_b32 s49, v11")
            a("s_and_b32 s63, s48, 0x10101010")
            a("s_cmp_eq_u32 s63, 0x10101010")
            a("s_cbranch_scc1 L_HOK")
            a("s_sub_u32 s62, s62, 1")
            a("s_cmp_eq_u32 s62, 0")
            a("s_cbranch_scc1 L_HOK")
            a("s_sleep 4")
            a("buffer_load_dwordx4 v[44:47], v7, s[32:35], s60 offen sc1")
            a("s_waitcnt vmcnt(0)")
            a("s_branch L_HCHK")
            a.label("L_HOK")
            a("s_and_b32 s63, s48, 0xff")
            a("s_mul_i32 s63, s63, 0x01010101")
            a("s_cmp_eq_u32 s63, s49")
            a("s_cselect_b32 s61, 1, 0")
            a("s_cmp_eq_u32 s48, s49")
            a("s_cselect_b32 s61, s61, 0")
            if opt.get("forceslow"):
                a("s_mov_b32 s61, 0")
            a("v_mov_b32 v10, s61")
            a(f"v_mov_b32 v11, {MODE_LDS}")
            a("ds_write_b32 v11, v10")
            a("s_cmp_eq_u32 s61, 1")
            a("s_cbranch_scc0 L_HSLOW")
            a("buffer_store_dword v7, v6, s[28:31], s57 offen")
            a.label("L_HSLOW")
            a("s_waitcnt lgkmcnt(0)")
        if n == 28:
            a("s_waitcnt vmcnt(0)")
        for pl in (1, 2, 3):
            if plane_avail[pl] == n + 1:
                assert sum(1 for tg in hq if tg == ("x", pl)) == 18
                hwait(("x", pl))
        a("s_barrier")
    a("s_endpgm")

    a.label("L_LOADER")
    a("v_lshrrev_b32 v8, 3, v2")
    a("s_lshl_b32 s48, s45, 3")
    a("v_add_u32 v8, s48, v8")
    a("v_lshlrev_b32 v8, 10, v8")
    a("v_bfe_u32 v9, v2, 4, 1")
    a("s_and_b32 s48, s45, 1")
    a("s_lshl_b32 s48, s48, 1")
    a("v_or_b32 v9, s48, v9")
    a("v_lshlrev_b32 v9, 1, v9")
    a("v_and_b32 v10, 7, v2")
    a("v_xor_b32 v9, v9, v10")
    a("v_lshl_add_u32 v8, v9, 4, v8")
    a("s_lshl_b32 s48, s42, 7")
    a("s_lshl_b32 s49, s41, 17")
    a("s_add_u32 s48, s48, s49")
    a("v_add_u32 v8, s48, v8")
    a(f"s_add_u32 s54, s51, {RING_BASE}")
    a("s_waitcnt lgkmcnt(0)")
    ST.stamp(1)
    finish_srds()
    vq = []

    def w_unit(u):
        cb, p, i, tap = st[u]
        a(f"s_add_u32 m0, s54, {(u % RING_UNITS) * 4096}")
        a(f"s_mov_b32 s48, {tap * 524288 + cb * 32768}")
        if not (opt.get("nodma") and u >= 20):
            a("buffer_load_dwordx4 v8, s[24:27], s48 offen lds")
        vq.append(("w", u // 4))

    def w_slot(n):
        for k in range(4):
            w_unit(4 * n + k)

    def lx(pl, i):
        x_piece(pl, i)
        vq.append(("x", pl))

    def lwait(tags):
        idx = max(k for k, tg in enumerate(vq) if tg in tags)
        n = len(vq) - 1 - idx
        assert n <= 63
        a(f"s_waitcnt vmcnt({n})")

    w_slot(0); w_slot(1)
    other_srds()
    ST.stamp(2)
    lwait([("w", 0)])
    ST.stamp(3)
    a("s_barrier")
    ST.stamp(4)
    ST.cstamp(8)
    for n in range(30):
        if n == 0:
            w_slot(2); w_slot(3)
        elif n + 3 <= 30:
            w_slot(n + 3)
        lwait([("w", n + 1)])
        a("s_barrier")
    ST.stamp(5)
    ST.cstamp(9)
    if ST.on:
        a("s_getreg_b32 s84, hwreg(HW_REG_XCC_ID)")
        a("s_add_u32 s84, s84, 1000")
    a("s_sleep %d" % opt.get("lsleep", 12))

    a.label("L_TAIL")
    TL = MODE_LDS
    a("s_lshl_b32 s48, s42, 7")
    a("s_lshl_b32 s49, s47, 3")
    a("s_add_u32 s48, s48, s49")
    a("s_lshl_b32 s60, s46, 8")
    a("s_lshr_b32 s49, s47, 2")
    a("s_lshl_b32 s49, s49, 6")
    a("s_add_u32 s60, s60, s49")
    a("s_lshr_b32 s49, s40, 1")
    a("s_lshl_b32 s49, s49, 4")
    a("s_add_u32 s60, s60, s49")
    a(f"s_add_u32 s60, s60, {FLAG_OFF}")
    a("v_mov_b32 v4, 0")
    a("buffer_load_dwordx4 v[8:11], v4, s[28:31], s60 offen sc1")
    a("v_lshlrev_b32 v1, 4, v0")
    a("s_add_u32 s57, s56, 8192")
    a("s_add_u32 s58, s56, 16384")
    a("s_add_u32 s59, s56, 24576")
    a("v_lshrrev_b32 v2, 7, v0")
    a("v_lshlrev_b32 v2, 7, v2")
    a("v_and_b32 v3, 15, v0")
    a("v_lshl_add_u32 v2, v3, 3, v2")
    a("v_bfe_u32 v3, v0, 4, 3")
    a("v_add_u32 v2, v2, v3")
    a("s_movk_i32 s49, 485")
    a("v_cmp_gt_u32 s[24:25], s49, v2")
    a("s_mul_i32 s49, s43, 485")
    a("v_add_u32 v2, s49, v2")
    a("v_lshlrev_b32 v2, 10, v2")
    a("v_add_u32 v2, s48, v2")
    a("v_lshrrev_b32 v5, 3, v0")
    a(f"v_lshlrev_b32 v5, 2, v5")
    a(f"v_add_u32 v5, {TL}, v5")
    a("v_and_b32 v6, 7, v0")
    a("v_lshlrev_b32 v6, 5, v6")
    a("v_bfe_u32 v7, v0, 3, 3")
    a("v_lshl_add_u32 v6, v7, 2, v6")
    a(f"v_add_u32 v6, {TL}, v6")
    c1 = -2.0 * 1.4426950408889634 * 0.7978845608028654
    c2 = c1 * 0.044715
    a(f"v_mov_b32 v52, {f2u(c1):#x}")
    a(f"v_mov_b32 v53, {f2u(c1):#x}")
    a(f"s_mov_b32 s20, {f2u(c2):#x}")
    a(f"s_mov_b32 s21, {f2u(c2):#x}")
    a("s_mov_b32 s22, 1.0")
    a("s_mov_b32 s23, 1.0")
    a(f"s_mov_b32 s26, {f2u(1.0/485.0):#x}")
    a(f"s_mov_b32 s63, {SPIN_LIMIT}")
    a("s_waitcnt lgkmcnt(0)")
    a("s_mov_b32 vcc_lo, 0")
    a("s_mov_b32 vcc_hi, -1")
    a("v_mov_b32 v50, s10")
    a("v_mov_b32 v54, s11")
    a("v_mov_b32 v51, s12")
    a("v_mov_b32 v55, s13")
    a("v_cndmask_b32 v50, v50, v54, vcc")
    a("v_cndmask_b32 v51, v51, v55, vcc")
    a("s_mov_b32 vcc_lo, 0xffff0000")
    a("s_mov_b32 vcc_hi, 0xffff0000")
    a("v_lshlrev_b32 v54, 16, v50")
    a("v_lshlrev_b32 v55, 16, v51")
    a("v_and_b32 v50, 0xffff0000, v50")
    a("v_and_b32 v51, 0xffff0000, v51")
    a("v_cndmask_b32 v50, v54, v50, vcc")
    a("v_cndmask_b32 v51, v55, v51, vcc")
    ST.stamp(14)
    a.label("L_POLL")
    a("s_waitcnt vmcnt(0)")
    a("v_and_b32 v8, v8, v9")
    a("v_and_b32 v10, v10, v11")
    a("v_and_b32 v8, v8, v10")
    a("s_sub_u32 s63, s63, 1")
    a("v_readfirstlane_b32 s49, v8")
    a("s_cmp_eq_u32 s49, 1")
    a("s_cbranch_scc1 L_GOT")
    a("s_cmp_eq_u32 s63, 0")
    a("s_cbranch_scc1 L_GOT")
    if opt.get("psleep", 1):
        a("s_sleep %d" % opt.get("psleep", 1))
    a("buffer_load_dwordx4 v[8:11], v4, s[28:31], s60 offen sc1")
    a("s_branch L_POLL")
    a.label("L_GOT")
    ST.stamp(15)
    D = 96
    for s in range(4):
        a(f"buffer_load_dwordx4 {vr(D+4*s,4)}, v1, s[28:31], s{56+s} offen sc1")
    a("s_waitcnt vmcnt(2)")
    a(f"v_pk_add_f32 v[16:17], v[{D}:{D+1}], v[{D+4}:{D+5}]")
    a(f"v_pk_add_f32 v[18:19], v[{D+2}:{D+3}], v[{D+6}:{D+7}]")
    a("s_waitcnt vmcnt(0)")
    if ST.on:
        a("s_cmp_ge_u32 s40, 4")
        a("s_cbranch_scc1 L_ST0")
        ST.stamp(10)
        a.label("L_ST0")
    a(f"v_pk_add_f32 v[{D+8}:{D+9}], v[{D+8}:{D+9}], v[{D+12}:{D+13}]")
    a(f"v_pk_add_f32 v[{D+10}:{D+11}], v[{D+10}:{D+11}], v[{D+14}:{D+15}]")
    a(f"v_pk_add_f32 v[16:17], v[16:17], v[{D+8}:{D+9}]")
    a(f"v_pk_add_f32 v[18:19], v[18:19], v[{D+10}:{D+11}]")
    for r in range(4):
        a(f"v_cndmask_b32 v{20+r}, 0, v{16+r}, s[24:25]")
    a("v_pk_mul_f32 v[24:25], v[20:21], v[20:21]")
    a("v_pk_mul_f32 v[26:27], v[22:23], v[22:23]")
    a("v_permlane32_swap_b32 v20, v22")
    a("v_permlane32_swap_b32 v21, v23")
    a("v_permlane32_swap_b32 v24, v26")
    a("v_permlane32_swap_b32 v25, v27")
    a("v_add_f32 v20, v20, v22")
    a("v_add_f32 v21, v21, v23")
    a("v_add_f32 v24, v24, v26")
    a("v_add_f32 v25, v25, v27")
    a("s_nop 0")
    a("v_permlane16_swap_b32 v20, v21")
    a("v_permlane16_swap_b32 v24, v25")
    a("v_add_f32 v20, v20, v21")
    a("v_add_f32 v24, v24, v25")
    a("s_nop 0")
    a("v_add_f32_dpp v28, v20, v20 row_ror:8 row_mask:0xf bank_mask:0x3")
    a("v_add_f32_dpp v28, v24, v24 row_ror:8 row_mask:0xf bank_mask:0xc")

    def red8(r):
        for mod in ("row_half_mirror", "quad_perm:[1,0,3,2]", "quad_perm:[2,3,0,1]"):
            a("s_nop 1")
            a(f"v_add_f32_dpp v{r}, v{r}, v{r} {mod} row_mask:0xf bank_mask:0xf")

    red8(28)
    a("ds_write_b32 v5, v28")
    a("s_waitcnt lgkmcnt(0)")
    a("s_barrier")
    a("ds_read_b32 v28, v6")
    a("s_waitcnt lgkmcnt(0)")
    a("v_mul_f32 v28, s26, v28")
    red8(28)
    a("s_nop 1")
    a("v_mov_b32_dpp v29, v28 row_ror:8 row_mask:0xf bank_mask:0xf")
    a("v_fma_f32 v29, -v28, v28, v29")
    a("v_max_f32 v29, 0, v29")
    a(f"v_add_f32 v29, {f2u(1e-5):#x}, v29")
    a("v_rsq_f32 v29, v29")
    a("s_nop 0")
    a("v_mul_f32 v29, v50, v29")
    a("v_fma_f32 v28, -v28, v29, v51")
    for r in range(4):
        a(f"v_readlane_b32 s{48+r}, v29, {16*r}")
    for r in range(4):
        a(f"v_readlane_b32 s{52+r}, v28, {16*r}")
    a("v_pk_mul_f32 v[16:17], v[16:17], s[48:49]")
    a("v_pk_mul_f32 v[18:19], v[18:19], s[50:51]")
    a("v_pk_add_f32 v[16:17], v[16:17], s[52:53]")
    a("v_pk_add_f32 v[18:19], v[18:19], s[54:55]")
    a("v_pk_mul_f32 v[20:21], v[16:17], v[16:17]")
    a("v_pk_mul_f32 v[22:23], v[18:19], v[18:19]")
    a("v_pk_fma_f32 v[20:21], v[20:21], s[20:21], v[52:53]")
    a("v_pk_fma_f32 v[22:23], v[22:23], s[20:21], v[52:53]")
    a("v_pk_mul_f32 v[20:21], v[20:21], v[16:17]")
    a("v_pk_mul_f32 v[22:23], v[22:23], v[18:19]")
    for r in range(4):
        a(f"v_exp_f32 v{20+r}, v{20+r}")
    a("s_nop 0")
    a("v_pk_add_f32 v[20:21], v[20:21], s[22:23]")
    a("v_pk_add_f32 v[22:23], v[22:23], s[22:23]")
    for r in range(4):
        a(f"v_rcp_f32 v{20+r}, v{20+r}")
    a("s_nop 0")
    a("v_pk_mul_f32 v[16:17], v[16:17], v[20:21]")
    a("v_pk_mul_f32 v[18:19], v[18:19], v[22:23]")
    a("v_cvt_pk_bf16_f32 v8, v16, v17")
    a("v_cvt_pk_bf16_f32 v9, v18, v19")
    a("s_and_saveexec_b64 s[26:27], s[24:25]")
    a("s_cbranch_execz L_FIN")
    a("buffer_store_dwordx2 v[8:9], v2, s[36:39], 0 offen")
    a.label("L_FIN")
    if ST.on:
        a("s_mov_b64 exec, -1")
        a("s_cmp_ge_u32 s40, 4")
        a("s_cbranch_scc1 L_ST1")
        ST.stamp(11)
        a("s_branch L_ST2")
        a.label("L_ST1")
        ST.stamp(6)
        a("s_waitcnt vmcnt(0)")
        ST.stamp(7)
        a.label("L_ST2")
        ST.dump(18, 40)
    a.label("L_END")
    a("s_endpgm")
    return NV


TOUCH = """
.globl touch_kernel
.p2align 8
.type touch_kernel,@function
touch_kernel:
    s_load_dwordx8 s[4:11], s[0:1], 0
    s_load_dwordx8 s[12:19], s[0:1], 32
    v_lshlrev_b32 v1, 18, v0
    v_add_u32 v1, 0x3ff00, v1
    s_waitcnt lgkmcnt(0)
    s_mov_b32 s20, s6
    s_and_b32 s21, s7, 0xffff
    s_mov_b32 s22, 16252928
    s_mov_b32 s23, 0x20000
    buffer_load_dword v2, v1, s[20:23], 0 offen
    s_mov_b32 s24, s4
    s_and_b32 s25, s5, 0xffff
    s_mov_b32 s26, 2048000
    s_mov_b32 s27, 0x20000
    buffer_load_dword v3, v1, s[24:27], 0 offen
    s_mov_b32 s28, s18
    s_and_b32 s29, s19, 0xffff
    s_mov_b32 s30, 16000000
    s_mov_b32 s31, 0x20000
    buffer_load_dword v4, v1, s[28:31], 0 offen
    s_mov_b32 s32, s14
    s_and_b32 s33, s15, 0xffff
    s_mov_b32 s34, 993280
    s_mov_b32 s35, 0x20000
    buffer_load_dword v5, v1, s[32:35], 0 offen
    s_waitcnt vmcnt(0)
    s_endpgm
"""


def main():
    opt = {}
    for arg in sys.argv[2:]:
        k, v = arg.split("=")
        opt[k] = int(v)
    a = Asm()
    nv = gen(a, opt)
    out = HEADER
    if opt.get("touch"):
        out += f"; @launch kernel=touch_kernel grid=(256,1,1) block=(64,1,1) lds=0\n"
        out += f"; @launch kernel={KNAME} grid=(256,1,1) block=(576,1,1) lds={LDS_BYTES}\n"
    else:
        out += f"; @launch grid=(256,1,1) block=(576,1,1) lds={LDS_BYTES}\n"
    out += '.amdgcn_target "amdgcn-amd-amdhsa--gfx950"\n.text\n'
    out += a.text()
    if opt.get("touch"):
        out += TOUCH
    out += '.section .rodata,"a"\n'
    if opt.get("touch"):
        out += kd("touch_kernel", 16, 64)
    out += kd(KNAME, nv, 102 if opt.get("stamps") else 64)
    open(sys.argv[1], "w").write(out)


if __name__ == "__main__":
    main()
```

```python
import sys, struct
from gen2 import Asm, vr, srd, Stamps, kd, HEADER, KNAME, f2u

PASSES = [(0, 0), (1, 0), (0, 1), (1, 1)]
J = 16
W_BYTES = 31 * 512 * 512 * 2
OUT_BYTES = 2 * 485 * 512 * 2
EX_BYTES = 256 * 32768
FLAG_OFF = EX_BYTES
WS_BYTES = EX_BYTES + 16 * 1024
PLANE = 34 * 1024
XLDS = 2 * PLANE
RING_UNITS = 16
RING_BASE = XLDS
MODE_LDS = XLDS + RING_UNITS * 4096
TL = MODE_LDS + 256
LDS_BYTES = MODE_LDS + 512
SPIN_LIMIT = 40000


def steps_list():
    st = []
    for cb, p in PASSES:
        for i in range(16 - p):
            st.append((cb, p, i, 2 * i + p))
    return st


def gen(a, opt):
    RX = 32
    ST = Stamps(a, opt.get("stamps", 0))
    V_ACC = 16
    V_W = 80
    V_X = 88
    V_XA = V_X + 4 * RX
    V_WA = V_XA + 8
    NV = V_WA + 1
    st = steps_list()
    NS = len(st)
    N0 = opt.get("n0", 4)
    PER = opt.get("per", 4)
    LA = opt.get("la", 10)

    a.raw(f".globl {KNAME}")
    a.raw(".p2align 8")
    a.raw(f".type {KNAME},@function")
    a.label(KNAME)
    a("s_cmp_ge_u32 s2, 256")
    a("s_cbranch_scc1 L_END0")
    ST.init()
    ST.stamp(0)
    a("s_load_dwordx8 s[4:11], s[0:1], 0")
    a("s_load_dwordx8 s[12:19], s[0:1], 32")
    a("v_lshrrev_b32 v1, 6, v0")
    a("v_and_b32 v2, 63, v0")
    a("s_and_b32 s42, s2, 7")
    a("v_readfirstlane_b32 s40, v1")
    a("s_bfe_u32 s47, s2, 0x40003")
    a("s_lshr_b32 s43, s2, 7")
    a("s_and_b32 s41, s47, 7")
    a("s_lshr_b32 s44, s47, 3")
    a("s_and_b32 s45, s40, 3")
    a("s_lshl_b32 s46, s43, 3")
    a("s_add_u32 s46, s46, s42")
    a("s_mul_i32 s52, s43, 1024000")
    a("s_lshl_b32 s48, s44, 19")
    a("s_add_u32 s52, s52, s48")
    a("s_lshl_b32 s48, s41, 7")
    a("s_add_u32 s52, s52, s48")
    a("s_lshl_b32 s48, s45, 15")
    a("s_add_u32 s50, s52, s48")
    a("s_lshl_b32 s51, s45, 11")
    a("s_and_b32 s48, s45, 1")
    a("s_add_u32 s48, s48, 32")
    a("s_lshl_b32 s53, s48, 10")
    a("s_lshl_b32 s48, s48, 14")
    a("s_add_u32 s52, s52, s48")
    a("v_lshrrev_b32 v3, 4, v2")
    a("v_lshlrev_b32 v3, 12, v3")
    a("v_bfe_u32 v4, v2, 3, 1")
    a("v_lshl_add_u32 v3, v4, 11, v3")
    a("v_and_b32 v4, 7, v2")
    a("v_lshl_add_u32 v6, v4, 4, v3")
    a("s_lshl_b32 s48, s45, 5")
    a("v_xor_b32 v4, s48, v6")
    a("v_xor_b32 v5, 0x800, v4")
    a("s_add_u32 s48, s43, 1")
    a("s_mul_i32 s22, s48, 1024000")
    a("s_mov_b32 s23, 0x20000")
    a("s_cmp_ge_u32 s40, 4")
    a("s_cbranch_scc0 L_COMPUTE")

    def x_piece(p, k):
        if k < 8:
            i, e = k >> 1, k & 1
            a(f"s_add_u32 m0, s51, {p*PLANE + i*8192 + e*1024}")
            a(f"s_add_u32 s48, s50, {p*1024 + i*131072 + e*16384}")
            a(f"buffer_load_dwordx4 v{4 + (i & 1)}, s[20:23], s48 offen lds")
        else:
            a(f"s_add_u32 m0, s53, {p*PLANE}")
            a(f"s_add_u32 s48, s52, {p*1024}")
            a("buffer_load_dwordx4 v6, s[20:23], s48 offen lds")

    def gb_loads():
        a("s_lshl_b32 s48, s42, 7")
        a("s_lshl_b32 s49, s47, 3")
        a("s_add_u32 s48, s48, s49")
        a("s_load_dwordx2 s[8:9], s[8:9], s48")
        a("s_load_dwordx2 s[10:11], s[10:11], s48")
        a("s_load_dwordx2 s[12:13], s[12:13], s48")

    def other_srds():
        srd(a, 28, 18, 19, WS_BYTES)
        srd(a, 36, 14, 15, OUT_BYTES)

    def flag_addr():
        a("s_lshl_b32 s62, s46, 10")
        a("s_lshl_b32 s48, s45, 8")
        a("s_add_u32 s62, s62, s48")
        a("s_lshl_b32 s48, s44, 7")
        a("s_add_u32 s62, s62, s48")
        a("s_lshl_b32 s48, s41, 2")
        a("s_add_u32 s62, s62, s48")
        a(f"s_add_u32 s62, s62, {FLAG_OFF}")

    def inbox_base():
        a("s_lshl_b32 s56, s46, 4")
        a("s_add_u32 s56, s56, s47")
        a("s_lshl_b32 s56, s56, 15")

    a("v_lshrrev_b32 v8, 3, v2")
    a("s_lshl_b32 s48, s45, 3")
    a("v_add_u32 v8, s48, v8")
    a("v_lshlrev_b32 v8, 10, v8")
    a("v_bfe_u32 v9, v2, 4, 1")
    a("s_and_b32 s48, s45, 1")
    a("s_lshl_b32 s48, s48, 1")
    a("v_or_b32 v9, s48, v9")
    a("v_lshlrev_b32 v9, 1, v9")
    a("v_and_b32 v10, 7, v2")
    a("v_xor_b32 v9, v9, v10")
    a("v_lshl_add_u32 v8, v9, 4, v8")
    a("s_lshl_b32 s48, s42, 7")
    a("s_lshl_b32 s49, s41, 16")
    a("s_add_u32 s48, s48, s49")
    a("v_add_u32 v8, s48, v8")
    a("s_lshl_b32 s54, s45, 10")
    a(f"s_add_u32 s54, s54, {RING_BASE}")
    a("s_mov_b32 s26, %d" % W_BYTES)
    a("s_mov_b32 s27, 0x20000")
    a("s_waitcnt lgkmcnt(0)")
    ST.stamp(1)
    a("s_mov_b32 s24, s6")
    a("s_and_b32 s25, s7, 0xffff")
    vq = []

    def w_unit(u):
        cb, p, i, tap = st[u]
        a(f"s_add_u32 m0, s54, {(u % RING_UNITS) * 4096}")
        a(f"s_mov_b32 s48, {tap * 524288 + cb * 32768}")
        a("buffer_load_dwordx4 v8, s[24:27], s48 offen lds")
        vq.append(("w", u // 2))

    for u in range(N0):
        w_unit(u)
    a("s_branch L_LOADLOOP")
    a.label("L_END0")
    a("s_endpgm")

    a.label("L_COMPUTE")
    a("v_and_b32 v3, 15, v2")
    a("v_lshrrev_b32 v1, 4, v2")
    for d in range(2):
        a(f"v_add_u32 v7, {d}, v3")
        a("v_and_b32 v7, 7, v7")
        a("v_lshlrev_b32 v7, 1, v7")
        a("v_xor_b32 v7, v1, v7")
        a("v_lshlrev_b32 v7, 4, v7")
        a(f"v_lshl_add_u32 v{V_XA + 4*d}, v3, 11, v7")
    a("s_waitcnt lgkmcnt(0)")
    ST.stamp(1)
    a("s_mov_b32 s20, s4")
    a("s_and_b32 s21, s5, 0xffff")
    for k in range(9):
        x_piece(0, k)
    gb_loads()
    other_srds()
    for d in range(2):
        for z in range(1, 4):
            a(f"v_xor_b32 v{V_XA + 4*d + z}, {z << 6}, v{V_XA + 4*d}")
    a("v_lshrrev_b32 v4, 2, v3")
    a("v_lshl_add_u32 v4, v1, 3, v4")
    a("v_lshlrev_b32 v4, 7, v4")
    a("v_lshrrev_b32 v5, 3, v3")
    a("v_and_b32 v6, 1, v1")
    a("v_lshl_or_b32 v5, v6, 1, v5")
    a("v_xor_b32 v5, s40, v5")
    a("v_lshl_add_u32 v4, v5, 5, v4")
    a("v_and_b32 v5, 3, v3")
    a("v_lshl_add_u32 v4, v5, 3, v4")
    a(f"v_add_u32 v{V_WA}, {RING_BASE}, v4")
    a("s_lshl_b32 s48, s40, 2")
    a("v_add_u32 v6, s48, v1")
    a("v_lshlrev_b32 v6, 15, v6")
    a("v_lshl_add_u32 v6, v3, 4, v6")
    a("s_lshl_b32 s55, s46, 19")
    a("s_lshl_b32 s48, s41, 12")
    a("s_add_u32 s55, s55, s48")
    a("s_lshl_b32 s48, s44, 11")
    a("s_add_u32 s55, s55, s48")
    flag_addr()
    a("v_mov_b32 v8, 1")
    a("v_mov_b32 v9, 0")
    a(f"v_mov_b32 v7, {MODE_LDS}")
    a("s_waitcnt vmcnt(0)")
    ST.stamp(2)
    a("s_barrier")
    ST.stamp(3)

    frags = []
    pass_off = {}
    for cb, p in PASSES:
        pass_off[(cb, p)] = len(frags)
        for f in range(16 - p + J - 1):
            frags.append((cb, p, f))
    lds_q = []
    plane_avail = {0: 0, 1: opt.get("av1", 11)}
    bars_done = [0]
    B_MODE = opt.get("bmode", 24)

    def issue_x(F):
        cb, p, f = frags[F]
        d = f >> 4
        z = (f & 1) * 2 + cb
        r = V_X + 4 * (F % RX)
        assert bars_done[0] >= plane_avail[p]
        a(f"ds_read_b128 {vr(r,4)}, v{V_XA + 4*d + z} offset:{p*PLANE + (f>>1)*256}")
        lds_q.append(("x", F))

    def issue_w(t, h):
        off = (t % RING_UNITS) * 4096 + h * 512
        r = V_W + 4 * (t % 2) + 2 * h
        assert bars_done[0] >= t // 2
        a(f"ds_read_b64_tr_b16 {vr(r,2)}, v{V_WA} offset:{off}")
        lds_q.append(("w", t, h))

    waited = [-1]

    def wait_for(tags):
        idx = max(lds_q.index(tg) for tg in tags)
        if idx <= waited[0]:
            return
        n = len(lds_q) - 1 - idx
        if n > 15:
            n = 15
            idx = len(lds_q) - 1 - n
        a(f"s_waitcnt lgkmcnt({n})")
        waited[0] = idx

    nx = 0
    issue_w(0, 0); issue_w(0, 1)
    for F in range(12):
        issue_x(F); nx += 1

    XPS = opt.get("xps", 3)
    T_MODE = 2 * B_MODE + 1
    for t in range(NS):
        cb, p, i, tap = st[t]
        off = pass_off[(cb, p)]
        fmin = off + i
        if t % 8 == 4 and t < 48:
            ST.stamp(4 + t // 8)
        side = []
        nb = bars_done[0]
        if (t + 1) % 2 == 0 and t + 1 < NS:
            side.append(("bar",))
            nb += 1
        xs = []
        tmp = nx
        lim = 8 if t == 0 else XPS
        while len(xs) < lim and tmp < len(frags) and tmp - fmin < RX and nb >= plane_avail[frags[tmp][1]]:
            xs.append(("x", tmp)); tmp += 1
        ws = [("w", t + 1, 0), ("w", t + 1, 1)] if t + 1 < NS else []
        side += (xs[:4] + ws + xs[4:]) if t == 0 else (ws + xs)
        if t == T_MODE:
            assert bars_done[0] >= B_MODE
            side.append(("mode",))
        if t == T_MODE + 2:
            wait_for([("mode",)])
            side.append(("raw", ["v_readfirstlane_b32 s61, v10"]))
        for j in range(J):
            acc = V_ACC + 4 * j
            xr = V_X + 4 * ((off + i + j) % RX)
            wr = V_W + 4 * (t % 2)
            c = "0" if t == 0 else vr(acc, 4)
            if t == 0:
                wait_for([("w", t, 0), ("w", t, 1), ("x", off + i + j)])
            elif j == 0:
                wait_for([("w", t, 0), ("w", t, 1)] + [("x", off + i + k) for k in range(J // 2)])
            elif j == J // 2:
                wait_for([("x", off + i + k) for k in range(J)])
            a(f"v_mfma_f32_16x16x32_bf16 {vr(acc,4)}, {vr(wr,4)}, {vr(xr,4)}, {c}")
            if side:
                s = side.pop(0)
                if s[0] == "bar":
                    a("s_barrier"); bars_done[0] += 1
                elif s[0] == "w":
                    issue_w(s[1], s[2])
                elif s[0] == "x":
                    issue_x(s[1]); nx += 1
                elif s[0] == "mode":
                    a("ds_read_b32 v10, v7")
                    lds_q.append(("mode",))
                else:
                    for ln in s[1]:
                        if ln.endswith(":"):
                            a.label(ln[:-1])
                        else:
                            a(ln)
        assert not side, (t, side)
    ST.stamp(12)

    def publish(fl):
        for jp in range(8):
            P = V_X + 4 * jp
            A = V_ACC + 8 * jp
            a(f"v_cvt_pk_bf16_f32 v{P}, v{A}, v{A+1}")
            a(f"v_cvt_pk_bf16_f32 v{P+1}, v{A+2}, v{A+3}")
            a(f"v_cvt_pk_bf16_f32 v{P+2}, v{A+4}, v{A+5}")
            a(f"v_cvt_pk_bf16_f32 v{P+3}, v{A+6}, v{A+7}")
            a(f"buffer_store_dwordx4 {vr(P, 4)}, v6, s[28:31], s55 offen offset:{jp*256}{fl}")

    a("s_cmp_eq_u32 s61, 1")
    a("s_cbranch_scc0 L_PUBSLOW")
    publish("")
    ST.stamp(13)

    a.label("L_TAIL")
    inbox_base()
    a("s_add_u32 s57, s56, 4096")
    a("s_add_u32 s58, s56, 8192")
    a("s_add_u32 s59, s56, 12288")
    a("s_lshl_b32 s48, s42, 7")
    a("s_lshl_b32 s49, s47, 3")
    a("s_add_u32 s48, s48, s49")
    a("s_lshl_b32 s60, s46, 10")
    a("s_lshr_b32 s49, s47, 2")
    a("s_lshl_b32 s49, s49, 8")
    a("s_add_u32 s60, s60, s49")
    a("s_lshr_b32 s49, s40, 2")
    a("s_lshl_b32 s49, s49, 7")
    a("s_add_u32 s60, s60, s49")
    a(f"s_add_u32 s60, s60, {FLAG_OFF}")
    a("v_and_b32 v4, 7, v0")
    a("v_lshlrev_b32 v16, 5, v4")
    a("v_lshlrev_b32 v4, 2, v4")
    a("v_bfe_u32 v3, v0, 5, 1")
    a("v_and_b32 v1, 31, v0")
    a("v_lshlrev_b32 v1, 4, v1")
    a("v_lshl_add_u32 v1, v3, 14, v1")
    a("s_lshl_b32 s49, s40, 9")
    a("v_add_u32 v1, s49, v1")
    a("v_and_b32 v2, 15, v0")
    a("v_lshl_add_u32 v2, v2, 4, v3")
    a("v_bfe_u32 v3, v0, 4, 1")
    a("v_lshl_add_u32 v2, v3, 1, v2")
    a("s_lshr_b32 s49, s40, 2")
    a("s_lshl_b32 s49, s49, 8")
    a("s_lshl_b32 s50, s45, 2")
    a("s_add_u32 s49, s49, s50")
    a("v_add_u32 v2, s49, v2")
    a("s_movk_i32 s49, 485")
    a("v_cmp_gt_u32 s[24:25], s49, v2")
    a("s_mul_i32 s49, s43, 485")
    a("v_add_u32 v2, s49, v2")
    a("v_lshlrev_b32 v2, 10, v2")
    a("v_add_u32 v2, s48, v2")
    a("v_lshrrev_b32 v5, 3, v0")
    a("v_lshlrev_b32 v5, 2, v5")
    a(f"v_add_u32 v5, {TL}, v5")
    a("v_bfe_u32 v7, v0, 3, 3")
    a("v_lshl_add_u32 v56, v7, 2, v16")
    a(f"v_add_u32 v56, {TL}, v56")
    c1 = -2.0 * 1.4426950408889634 * 0.7978845608028654
    c2 = c1 * 0.044715
    a(f"v_mov_b32 v52, {f2u(c1):#x}")
    a(f"v_mov_b32 v53, {f2u(c1):#x}")
    a(f"s_mov_b32 s20, {f2u(c2):#x}")
    a(f"s_mov_b32 s21, {f2u(c2):#x}")
    a("s_mov_b32 s22, 1.0")
    a("s_mov_b32 s23, 1.0")
    a(f"s_mov_b32 s26, {f2u(1.0/485.0):#x}")
    a(f"s_mov_b32 s63, {SPIN_LIMIT}")
    a("s_waitcnt lgkmcnt(0)")
    a("s_lshl_b32 s4, s8, 16")
    a("s_and_b32 s5, s8, 0xffff0000")
    a("s_lshl_b32 s6, s9, 16")
    a("s_and_b32 s7, s9, 0xffff0000")
    a("s_mov_b32 vcc_lo, 0")
    a("s_mov_b32 vcc_hi, -1")
    a("v_mov_b32 v50, s10")
    a("v_mov_b32 v54, s11")
    a("v_mov_b32 v51, s12")
    a("v_mov_b32 v55, s13")
    a("v_cndmask_b32 v50, v50, v54, vcc")
    a("v_cndmask_b32 v51, v51, v55, vcc")
    a("s_mov_b32 vcc_lo, 0xffff0000")
    a("s_mov_b32 vcc_hi, 0xffff0000")
    a("v_lshlrev_b32 v54, 16, v50")
    a("v_lshlrev_b32 v55, 16, v51")
    a("v_and_b32 v50, 0xffff0000, v50")
    a("v_and_b32 v51, 0xffff0000, v51")
    a("v_cndmask_b32 v50, v54, v50, vcc")
    a("v_cndmask_b32 v51, v55, v51, vcc")
    a("s_mov_b32 s27, 0xffff0000")
    D = 128
    a("s_cmp_eq_u32 s61, 1")
    a("s_cbranch_scc0 L_TAILSLOW")

    def poll(tag, fflag, sleep):
        a("s_cmp_ge_u32 s40, 4")
        a(f"s_cbranch_scc1 L_NOFLAG{tag}")
        a("s_waitcnt vmcnt(0)")
        a(f"buffer_store_dword v8, v9, s[28:31], s62 offen{fflag}")
        a.label(f"L_NOFLAG{tag}")
        a("s_barrier")
        ST.stamp(14)
        a.label(f"L_POLL{tag}")
        a("buffer_load_dword v60, v4, s[28:31], s60 offen sc1")
        a("s_sub_u32 s63, s63, 1")
        a("s_waitcnt vmcnt(0)")
        a("v_cmp_ne_u32 vcc, 1, v60")
        a("s_cmp_eq_u64 vcc, 0")
        a("s_cbranch_scc1 L_GOT")
        a("s_cmp_eq_u32 s63, 0")
        a("s_cbranch_scc1 L_GOT")
        if sleep:
            a(f"s_sleep {sleep}")
        a(f"s_branch L_POLL{tag}")

    poll("FAST", "", opt.get("psleep", 0))
    a.label("L_GOT")
    ST.stamp(15)
    for q in range(4):
        a(f"buffer_load_dwordx4 {vr(D+4*q,4)}, v1, s[28:31], s{56+q} offen sc1")
    for q in range(4):
        a(f"s_waitcnt vmcnt({3-q})")
        if q == 3:
            ST.stamp(10)
        T = 16 if q == 0 else 24
        for k in range(4):
            a(f"v_lshlrev_b32 v{T+2*k}, 16, v{D+4*q+k}")
            a(f"v_and_b32 v{T+2*k+1}, s27, v{D+4*q+k}")
        if q:
            for k in range(4):
                a(f"v_pk_add_f32 v[{16+2*k}:{17+2*k}], v[{16+2*k}:{17+2*k}], v[{24+2*k}:{25+2*k}]")
    a("s_nop 1")
    for r in range(4):
        a(f"v_permlane32_swap_b32 v{16+r}, v{20+r}")
    a("v_pk_add_f32 v[16:17], v[16:17], v[20:21]")
    a("v_pk_add_f32 v[18:19], v[18:19], v[22:23]")
    a("v_pk_add_f32 v[16:17], v[16:17], s[4:5]")
    a("v_pk_add_f32 v[18:19], v[18:19], s[6:7]")
    for r in range(4):
        a(f"v_cndmask_b32 v{20+r}, 0, v{16+r}, s[24:25]")
    a("v_pk_mul_f32 v[24:25], v[20:21], v[20:21]")
    a("v_pk_mul_f32 v[26:27], v[22:23], v[22:23]")
    a("v_permlane32_swap_b32 v20, v22")
    a("v_permlane32_swap_b32 v21, v23")
    a("v_permlane32_swap_b32 v24, v26")
    a("v_permlane32_swap_b32 v25, v27")
    a("v_add_f32 v20, v20, v22")
    a("v_add_f32 v21, v21, v23")
    a("v_add_f32 v24, v24, v26")
    a("v_add_f32 v25, v25, v27")
    a("s_nop 0")
    a("v_permlane16_swap_b32 v20, v21")
    a("v_permlane16_swap_b32 v24, v25")
    a("v_add_f32 v20, v20, v21")
    a("v_add_f32 v24, v24, v25")
    a("s_nop 0")
    a("v_add_f32_dpp v28, v20, v20 row_ror:8 row_mask:0xf bank_mask:0x3")
    a("v_add_f32_dpp v28, v24, v24 row_ror:8 row_mask:0xf bank_mask:0xc")

    def red8(r):
        for mod in ("row_half_mirror", "quad_perm:[1,0,3,2]", "quad_perm:[2,3,0,1]"):
            a("s_nop 1")
            a(f"v_add_f32_dpp v{r}, v{r}, v{r} {mod} row_mask:0xf bank_mask:0xf")

    red8(28)
    a("ds_write_b32 v5, v28")
    a("s_waitcnt lgkmcnt(0)")
    a("s_barrier")
    a("ds_read_b32 v28, v56")
    a("s_waitcnt lgkmcnt(0)")
    a("v_mul_f32 v28, s26, v28")
    red8(28)
    a("s_nop 1")
    a("v_mov_b32_dpp v29, v28 row_ror:8 row_mask:0xf bank_mask:0xf")
    a("v_fma_f32 v29, -v28, v28, v29")
    a("v_max_f32 v29, 0, v29")
    a(f"v_add_f32 v29, {f2u(1e-5):#x}, v29")
    a("v_rsq_f32 v29, v29")
    a("s_nop 0")
    a("v_mul_f32 v29, v50, v29")
    a("v_fma_f32 v28, -v28, v29, v51")
    for r in range(4):
        a(f"v_readlane_b32 s{48+r}, v29, {16*r}")
    for r in range(4):
        a(f"v_readlane_b32 s{52+r}, v28, {16*r}")
    a("v_pk_mul_f32 v[16:17], v[16:17], s[48:49]")
    a("v_pk_mul_f32 v[18:19], v[18:19], s[50:51]")
    a("v_pk_add_f32 v[16:17], v[16:17], s[52:53]")
    a("v_pk_add_f32 v[18:19], v[18:19], s[54:55]")
    a("v_pk_mul_f32 v[20:21], v[16:17], v[16:17]")
    a("v_pk_mul_f32 v[22:23], v[18:19], v[18:19]")
    a("v_pk_fma_f32 v[20:21], v[20:21], s[20:21], v[52:53]")
    a("v_pk_fma_f32 v[22:23], v[22:23], s[20:21], v[52:53]")
    a("v_pk_mul_f32 v[20:21], v[20:21], v[16:17]")
    a("v_pk_mul_f32 v[22:23], v[22:23], v[18:19]")
    for r in range(4):
        a(f"v_exp_f32 v{20+r}, v{20+r}")
    a("s_nop 0")
    a("v_pk_add_f32 v[20:21], v[20:21], s[22:23]")
    a("v_pk_add_f32 v[22:23], v[22:23], s[22:23]")
    for r in range(4):
        a(f"v_rcp_f32 v{20+r}, v{20+r}")
    a("s_nop 0")
    a("v_pk_mul_f32 v[16:17], v[16:17], v[20:21]")
    a("v_pk_mul_f32 v[18:19], v[18:19], v[22:23]")
    a("v_cvt_pk_bf16_f32 v8, v16, v17")
    a("v_cvt_pk_bf16_f32 v9, v18, v19")
    a("s_and_saveexec_b64 s[26:27], s[24:25]")
    a("s_cbranch_execz L_FIN")
    a("buffer_store_dwordx2 v[8:9], v2, s[36:39], 0 offen")
    a.label("L_FIN")
    if ST.on:
        a("s_mov_b64 exec, -1")
        ST.stamp(11)
        a("s_waitcnt vmcnt(0)")
        a("s_cmp_ge_u32 s40, 4")
        a("s_cbranch_scc0 L_ST2")
        ST.stamp(7)
        a.label("L_ST2")
        a("s_barrier")
        ST.dump(18, 40)
    a("s_endpgm")

    a.label("L_PUBSLOW")
    publish(" sc1")
    a("s_branch L_TAIL")
    a.label("L_TAILSLOW")
    poll("SLOW", " sc1", 8)

    a.label("L_LOADLOOP")
    a("s_mov_b32 s20, s4")
    a("s_and_b32 s21, s5, 0xffff")
    other_srds()
    a("s_lshl_b32 s58, s46, 10")
    a(f"s_add_u32 s58, s58, {FLAG_OFF}")
    for r in range(40, 44):
        a(f"v_mov_b32 v{r}, 0")
    a("v_lshlrev_b32 v49, 4, v2")
    a("s_cmp_eq_u32 s47, 0")
    a("s_cselect_b32 s55, 2, 1")
    a("s_cmp_eq_u32 s40, 4")
    a("s_cselect_b32 s55, s55, 0")
    a("s_cmp_eq_u32 s55, 2")
    a("s_cbranch_scc0 L_NORESET")
    a("buffer_store_dwordx4 v[40:43], v49, s[28:31], s58 offen sc1")
    a.label("L_NORESET")
    reset_pos = len(vq)
    gb_loads()
    srd(a, 32, 16, 17, 256)
    flag_addr()
    inbox_base()
    a("s_lshl_b32 s60, s46, 4")
    a("v_lshlrev_b32 v42, 7, v2")
    a("s_lshl_b32 s57, s45, 13")
    a("s_add_u32 s57, s57, s56")
    a("s_getreg_b32 s48, hwreg(HW_REG_XCC_ID, 0, 4)")
    a("s_or_b32 s48, s48, 0x10")
    a("v_mov_b32 v41, s48")
    a("s_lshl_b32 s59, s47, 2")
    a("s_add_u32 s59, s59, s58")
    a("v_and_b32 v50, 15, v2")
    a("v_lshlrev_b32 v50, 2, v50")

    def lwait(tags):
        idx = max(k for k, tg in enumerate(vq) if tg in tags)
        n = len(vq) - 1 - idx
        assert n <= 63
        a(f"s_waitcnt vmcnt({n})")

    def one_lane(ins):
        a("s_mov_b64 exec, 1")
        a(ins)
        a("s_mov_b64 exec, -1")

    nu = N0
    ST.stamp(2)
    lwait([("w", 0)])
    ST.stamp(3)
    a("s_barrier")
    ST.stamp(4)
    ST.cstamp(8)
    N_RDY = opt.get("nrdy", 1)
    N_RL = opt.get("nrl", 4)
    N_XCC = N_RL + 3
    N_CHK = opt.get("nchk", N_XCC + 3)
    N_MODE = N_CHK + 3
    N_TOUCH = opt.get("ntouch", N_MODE + 1)
    TSTEP = opt.get("tstep", 2)
    xq = list(range(9))
    X1 = opt.get("x1", 1)
    pos = {}
    for n in range(30):
        umax = min(NS - 1, 2 * n - 1 + RING_UNITS, 2 * n + 1 + LA)
        k = 0
        while nu <= umax and k < PER:
            w_unit(nu); nu += 1; k += 1
        assert nu >= min(NS, 2 * (n + 2)), (n, nu)
        if n >= X1:
            for _ in range(opt.get("xper", 2)):
                if xq:
                    x_piece(1, xq.pop(0)); vq.append("x1")
        if n == N_RDY:
            a("s_cmp_eq_u32 s55, 2")
            a("s_cbranch_scc0 L_NORDY")
            a(f"s_waitcnt vmcnt({len(vq) - reset_pos})")
            one_lane("buffer_store_dword v41, v40, s[32:35], s60 offen sc1")
            a.label("L_NORDY")
        if n == N_RL:
            a("s_cmp_eq_u32 s55, 0")
            a("s_cbranch_scc1 L_NORL")
            one_lane("buffer_load_dword v44, v40, s[32:35], s60 offen sc1")
            a.label("L_NORL")
            pos["rl"] = len(vq)
        if n == N_XCC:
            a("s_cmp_eq_u32 s55, 0")
            a("s_cbranch_scc1 L_NOXCC")
            a(f"s_waitcnt vmcnt({len(vq) - pos['rl']})")
            a(f"s_mov_b32 s63, {SPIN_LIMIT}")
            a.label("L_RCHK")
            a("v_readfirstlane_b32 s48, v44")
            a("s_cmp_lg_u32 s48, 0")
            a("s_cbranch_scc1 L_ROK")
            a("s_sub_u32 s63, s63, 1")
            a("s_cmp_eq_u32 s63, 0")
            a("s_cbranch_scc1 L_ROK")
            a("s_sleep 4")
            one_lane("buffer_load_dword v44, v40, s[32:35], s60 offen sc1")
            a("s_waitcnt vmcnt(0)")
            a("s_branch L_RCHK")
            a.label("L_ROK")
            one_lane("buffer_store_dword v41, v40, s[28:31], s59 offen offset:64 sc1")
            a.label("L_NOXCC")
        if n == N_CHK:
            a("s_cmp_eq_u32 s55, 0")
            a("s_cbranch_scc1 L_NOCHK")
            a("buffer_load_dword v44, v50, s[28:31], s58 offen offset:64 sc1")
            a.label("L_NOCHK")
            pos["chk"] = len(vq)
        if n == N_MODE:
            a("s_cmp_eq_u32 s55, 0")
            a("s_cbranch_scc1 L_NOMODE")
            a(f"s_waitcnt vmcnt({len(vq) - pos['chk']})")
            a(f"s_mov_b32 s63, {SPIN_LIMIT}")
            a.label("L_HCHK")
            a("v_cmp_eq_u32 vcc, 0, v44")
            a("s_cmp_eq_u64 vcc, 0")
            a("s_cbranch_scc1 L_HOK")
            a("s_sub_u32 s63, s63, 1")
            a("s_cmp_eq_u32 s63, 0")
            a("s_cbranch_scc1 L_HOK")
            a("s_sleep 4")
            a("buffer_load_dword v44, v50, s[28:31], s58 offen offset:64 sc1")
            a("s_waitcnt vmcnt(0)")
            a("s_branch L_HCHK")
            a.label("L_HOK")
            a("v_cmp_ne_u32 vcc, v41, v44")
            a("s_cmp_eq_u64 vcc, 0")
            a("s_cselect_b32 s61, 1, 0")
            if opt.get("forceslow"):
                a("s_mov_b32 s61, 0")
            a("v_mov_b32 v10, s61")
            a(f"v_mov_b32 v11, {MODE_LDS}")
            a("ds_write_b32 v11, v10")
            a("s_waitcnt lgkmcnt(0)")
            a.label("L_NOMODE")
        if n == N_MODE + 1:
            a(f"v_mov_b32 v11, {MODE_LDS}")
            a("ds_read_b32 v10, v11")
            a("s_waitcnt lgkmcnt(0)")
            a("v_readfirstlane_b32 s61, v10")
            a("s_lshl_b32 s49, s61, 2")
            a("s_add_u32 s55, s49, s45")
        if opt.get("touch", 1):
            for w in range(4):
                if n == N_TOUCH + TSTEP * w:
                    a(f"s_cmp_eq_u32 s55, {4 + w}")
                    a(f"s_cbranch_scc0 L_NOTOUCH{w}")
                    one_lane("buffer_load_dword v43, v40, s[28:31], s62 offen")
                    a("buffer_load_dword v48, v42, s[28:31], s57 offen")
                    a.label(f"L_NOTOUCH{w}")
        need = [("w", n + 1)]
        if n + 1 == plane_avail[1]:
            assert not xq
            need.append("x1")
        lwait(need)
        a("s_barrier")
    assert nu == NS
    assert N_MODE < B_MODE and N_TOUCH > N_MODE and N_TOUCH + 3 * TSTEP < 30
    ST.stamp(5)
    ST.cstamp(9)
    if ST.on:
        a("s_getreg_b32 s76, hwreg(HW_REG_XCC_ID)")
        a("s_add_u32 s76, s76, 1000")
    a("s_branch L_TAIL")
    return NV


def main():
    opt = {}
    for arg in sys.argv[2:]:
        k, v = arg.split("=")
        opt[k] = int(v)
    a = Asm()
    nv = gen(a, opt)
    out = HEADER
    out += f"; @launch grid=(256,1,1) block=(512,1,1) lds={LDS_BYTES}\n"
    out += '.amdgcn_target "amdgcn-amd-amdhsa--gfx950"\n.text\n'
    out += a.text()
    out += '.section .rodata,"a"\n'
    out += kd(KNAME, nv, 102 if opt.get("stamps") else 64)
    open(sys.argv[1], "w").write(out)


if __name__ == "__main__":
    main()
```

```python
import sys, struct
from gen2 import Asm, vr, srd, Stamps, kd, HEADER, KNAME, f2u

PASSES = [(0, 0), (1, 0), (0, 1), (1, 1)]
J = 16
W_BYTES = 31 * 512 * 512 * 2
OUT_BYTES = 2 * 485 * 512 * 2
EX_BYTES = 256 * 32768
FLAG_OFF = EX_BYTES
WS_BYTES = EX_BYTES + 16 * 1024
PLANE = 34 * 1024
XLDS = 2 * PLANE
RING_UNITS = 16
RING_BASE = XLDS
MODE_LDS = XLDS + RING_UNITS * 4096
TL = MODE_LDS + 256
LDS_BYTES = MODE_LDS + 512
SPIN_LIMIT = 40000


def steps_list():
    st = []
    for cb, p in PASSES:
        for i in range(16 - p):
            st.append((cb, p, i, 2 * i + p))
    return st


def gen(a, opt):
    RX = 32
    ST = Stamps(a, opt.get("stamps", 0))
    V_ACC = 16
    V_W = 80
    V_X = 88
    V_XA = V_X + 4 * RX
    V_WA = V_XA + 8
    NV = V_WA + 1
    st = steps_list()
    NS = len(st)
    N0 = opt.get("n0", 4)
    PER = opt.get("per", 4)
    LA = opt.get("la", 10)

    a.raw(f".globl {KNAME}")
    a.raw(".p2align 8")
    a.raw(f".type {KNAME},@function")
    a.label(KNAME)
    a("s_cmp_ge_u32 s2, 256")
    a("s_cbranch_scc1 L_END0")
    ST.init()
    ST.stamp(0)
    if opt.get("fixed"):
        a("s_memrealtime s[64:65]")
    a("s_load_dwordx8 s[4:11], s[0:1], 0")
    a("s_load_dwordx8 s[12:19], s[0:1], 32")
    a("v_lshrrev_b32 v1, 6, v0")
    a("v_and_b32 v2, 63, v0")
    a("s_and_b32 s42, s2, 7")
    a("v_readfirstlane_b32 s40, v1")
    a("s_bfe_u32 s47, s2, 0x40003")
    a("s_lshr_b32 s43, s2, 7")
    a("s_and_b32 s41, s47, 7")
    a("s_lshr_b32 s44, s47, 3")
    a("s_and_b32 s45, s40, 3")
    a("s_lshl_b32 s46, s43, 3")
    a("s_add_u32 s46, s46, s42")
    a("s_mul_i32 s52, s43, 1024000")
    a("s_lshl_b32 s48, s44, 19")
    a("s_add_u32 s52, s52, s48")
    a("s_lshl_b32 s48, s41, 7")
    a("s_add_u32 s52, s52, s48")
    a("s_lshl_b32 s48, s45, 15")
    a("s_add_u32 s50, s52, s48")
    a("s_lshl_b32 s51, s45, 11")
    a("s_and_b32 s48, s45, 1")
    a("s_add_u32 s48, s48, 32")
    a("s_lshl_b32 s53, s48, 10")
    a("s_lshl_b32 s48, s48, 14")
    a("s_add_u32 s52, s52, s48")
    a("v_lshrrev_b32 v3, 4, v2")
    a("v_lshlrev_b32 v3, 12, v3")
    a("v_bfe_u32 v4, v2, 3, 1")
    a("v_lshl_add_u32 v3, v4, 11, v3")
    a("v_and_b32 v4, 7, v2")
    a("v_lshl_add_u32 v6, v4, 4, v3")
    a("s_lshl_b32 s48, s45, 5")
    a("v_xor_b32 v4, s48, v6")
    a("v_xor_b32 v5, 0x800, v4")
    a("s_add_u32 s48, s43, 1")
    a("s_mul_i32 s22, s48, 1024000")
    a("s_mov_b32 s23, 0x20000")
    a("s_cmp_ge_u32 s40, 4")
    a("s_cbranch_scc0 L_COMPUTE")

    def x_piece(p, k):
        if k < 8:
            i, e = k >> 1, k & 1
            a(f"s_add_u32 m0, s51, {p*PLANE + i*8192 + e*1024}")
            a(f"s_add_u32 s48, s50, {p*1024 + i*131072 + e*16384}")
            a(f"buffer_load_dwordx4 v{4 + (i & 1)}, s[20:23], s48 offen lds")
        else:
            a(f"s_add_u32 m0, s53, {p*PLANE}")
            a(f"s_add_u32 s48, s52, {p*1024}")
            a("buffer_load_dwordx4 v6, s[20:23], s48 offen lds")

    def gb_loads():
        a("s_lshl_b32 s48, s42, 7")
        a("s_lshl_b32 s49, s47, 3")
        a("s_add_u32 s48, s48, s49")
        a("s_load_dwordx2 s[8:9], s[8:9], s48")
        a("s_load_dwordx2 s[10:11], s[10:11], s48")
        a("s_load_dwordx2 s[12:13], s[12:13], s48")

    def other_srds():
        srd(a, 28, 18, 19, WS_BYTES)
        srd(a, 36, 14, 15, OUT_BYTES)

    def flag_addr():
        a("s_lshl_b32 s62, s46, 10")
        a("s_lshl_b32 s48, s45, 8")
        a("s_add_u32 s62, s62, s48")
        a("s_lshl_b32 s48, s44, 7")
        a("s_add_u32 s62, s62, s48")
        a("s_lshl_b32 s48, s41, 2")
        a("s_add_u32 s62, s62, s48")
        a(f"s_add_u32 s62, s62, {FLAG_OFF}")

    def inbox_base():
        a("s_lshl_b32 s56, s46, 4")
        a("s_add_u32 s56, s56, s47")
        a("s_lshl_b32 s56, s56, 15")

    a("v_lshrrev_b32 v8, 3, v2")
    a("s_lshl_b32 s48, s45, 3")
    a("v_add_u32 v8, s48, v8")
    a("v_lshlrev_b32 v8, 10, v8")
    a("v_bfe_u32 v9, v2, 4, 1")
    a("s_and_b32 s48, s45, 1")
    a("s_lshl_b32 s48, s48, 1")
    a("v_or_b32 v9, s48, v9")
    a("v_lshlrev_b32 v9, 1, v9")
    a("v_and_b32 v10, 7, v2")
    a("v_xor_b32 v9, v9, v10")
    a("v_lshl_add_u32 v8, v9, 4, v8")
    a("s_lshl_b32 s48, s42, 7")
    a("s_lshl_b32 s49, s41, 16")
    a("s_add_u32 s48, s48, s49")
    a("v_add_u32 v8, s48, v8")
    a("s_lshl_b32 s54, s45, 10")
    a(f"s_add_u32 s54, s54, {RING_BASE}")
    a("s_mov_b32 s26, %d" % W_BYTES)
    a("s_mov_b32 s27, 0x20000")
    a("s_waitcnt lgkmcnt(0)")
    ST.stamp(1)
    a("s_mov_b32 s24, s6")
    a("s_and_b32 s25, s7, 0xffff")
    vq = []

    def w_unit(u):
        cb, p, i, tap = st[u]
        a(f"s_add_u32 m0, s54, {(u % RING_UNITS) * 4096}")
        a(f"s_mov_b32 s48, {tap * 524288 + cb * 32768}")
        a("buffer_load_dwordx4 v8, s[24:27], s48 offen lds")
        vq.append(("w", u // 2))

    for u in range(N0):
        w_unit(u)
    a("s_branch L_LOADLOOP")
    a.label("L_END0")
    a("s_endpgm")

    a.label("L_COMPUTE")
    a("v_and_b32 v3, 15, v2")
    a("v_lshrrev_b32 v1, 4, v2")
    for d in range(2):
        a(f"v_add_u32 v7, {d}, v3")
        a("v_and_b32 v7, 7, v7")
        a("v_lshlrev_b32 v7, 1, v7")
        a("v_xor_b32 v7, v1, v7")
        a("v_lshlrev_b32 v7, 4, v7")
        a(f"v_lshl_add_u32 v{V_XA + 4*d}, v3, 11, v7")
    a("s_waitcnt lgkmcnt(0)")
    ST.stamp(1)
    a("s_mov_b32 s20, s4")
    a("s_and_b32 s21, s5, 0xffff")
    for k in range(9):
        x_piece(0, k)
    gb_loads()
    other_srds()
    for d in range(2):
        for z in range(1, 4):
            a(f"v_xor_b32 v{V_XA + 4*d + z}, {z << 6}, v{V_XA + 4*d}")
    a("v_lshrrev_b32 v4, 2, v3")
    a("v_lshl_add_u32 v4, v1, 3, v4")
    a("v_lshlrev_b32 v4, 7, v4")
    a("v_lshrrev_b32 v5, 3, v3")
    a("v_and_b32 v6, 1, v1")
    a("v_lshl_or_b32 v5, v6, 1, v5")
    a("v_xor_b32 v5, s40, v5")
    a("v_lshl_add_u32 v4, v5, 5, v4")
    a("v_and_b32 v5, 3, v3")
    a("v_lshl_add_u32 v4, v5, 3, v4")
    a(f"v_add_u32 v{V_WA}, {RING_BASE}, v4")
    a("s_lshl_b32 s48, s40, 2")
    a("v_add_u32 v6, s48, v1")
    a("v_lshlrev_b32 v6, 15, v6")
    a("v_lshl_add_u32 v6, v3, 4, v6")
    a("s_lshl_b32 s55, s46, 19")
    a("s_lshl_b32 s48, s41, 12")
    a("s_add_u32 s55, s55, s48")
    a("s_lshl_b32 s48, s44, 11")
    a("s_add_u32 s55, s55, s48")
    flag_addr()
    a("v_mov_b32 v8, 1")
    a("v_mov_b32 v9, 0")
    a(f"v_mov_b32 v7, {MODE_LDS}")
    a("s_waitcnt vmcnt(0)")
    ST.stamp(2)
    a("s_barrier")
    ST.stamp(3)

    frags = []
    pass_off = {}
    for cb, p in PASSES:
        pass_off[(cb, p)] = len(frags)
        for f in range(16 - p + J - 1):
            frags.append((cb, p, f))
    lds_q = []
    plane_avail = {0: 0, 1: opt.get("av1", 11)}
    bars_done = [0]
    B_MODE = opt.get("bmode", 24)

    def issue_x(F):
        cb, p, f = frags[F]
        d = f >> 4
        z = (f & 1) * 2 + cb
        r = V_X + 4 * (F % RX)
        assert bars_done[0] >= plane_avail[p]
        a(f"ds_read_b128 {vr(r,4)}, v{V_XA + 4*d + z} offset:{p*PLANE + (f>>1)*256}")
        lds_q.append(("x", F))

    def issue_w(t, h):
        off = (t % RING_UNITS) * 4096 + h * 512
        r = V_W + 4 * (t % 2) + 2 * h
        assert bars_done[0] >= t // 2
        a(f"ds_read_b64_tr_b16 {vr(r,2)}, v{V_WA} offset:{off}")
        lds_q.append(("w", t, h))

    waited = [-1]

    def wait_for(tags):
        idx = max(lds_q.index(tg) for tg in tags)
        if idx <= waited[0]:
            return
        n = len(lds_q) - 1 - idx
        if n > 15:
            n = 15
            idx = len(lds_q) - 1 - n
        a(f"s_waitcnt lgkmcnt({n})")
        waited[0] = idx

    nx = 0
    issue_w(0, 0); issue_w(0, 1)
    for F in range(12):
        issue_x(F); nx += 1

    XPS = opt.get("xps", 3)
    T_MODE = 2 * B_MODE + 1
    for t in range(NS):
        cb, p, i, tap = st[t]
        off = pass_off[(cb, p)]
        fmin = off + i
        if t % 8 == 4 and t < 48:
            ST.stamp(4 + t // 8)
        side = []
        nb = bars_done[0]
        if (t + 1) % 2 == 0 and t + 1 < NS:
            side.append(("bar",))
            nb += 1
        xs = []
        tmp = nx
        lim = 8 if t == 0 else XPS
        while len(xs) < lim and tmp < len(frags) and tmp - fmin < RX and nb >= plane_avail[frags[tmp][1]]:
            xs.append(("x", tmp)); tmp += 1
        ws = [("w", t + 1, 0), ("w", t + 1, 1)] if t + 1 < NS else []
        side += (xs[:4] + ws + xs[4:]) if t == 0 else (ws + xs)
        if t == T_MODE:
            assert bars_done[0] >= B_MODE
            side.append(("mode",))
        if t == T_MODE + 2:
            wait_for([("mode",)])
            side.append(("raw", ["v_readfirstlane_b32 s61, v10"]))
        for j in range(J):
            acc = V_ACC + 4 * j
            xr = V_X + 4 * ((off + i + j) % RX)
            wr = V_W + 4 * (t % 2)
            c = "0" if t == 0 else vr(acc, 4)
            if t == 0:
                wait_for([("w", t, 0), ("w", t, 1), ("x", off + i + j)])
            elif j == 0:
                wait_for([("w", t, 0), ("w", t, 1)] + [("x", off + i + k) for k in range(J // 2)])
            elif j == J // 2:
                wait_for([("x", off + i + k) for k in range(J)])
            a(f"v_mfma_f32_16x16x32_bf16 {vr(acc,4)}, {vr(wr,4)}, {vr(xr,4)}, {c}")
            if side:
                s = side.pop(0)
                if s[0] == "bar":
                    a("s_barrier"); bars_done[0] += 1
                elif s[0] == "w":
                    issue_w(s[1], s[2])
                elif s[0] == "x":
                    issue_x(s[1]); nx += 1
                elif s[0] == "mode":
                    a("ds_read_b32 v10, v7")
                    lds_q.append(("mode",))
                else:
                    for ln in s[1]:
                        if ln.endswith(":"):
                            a.label(ln[:-1])
                        else:
                            a(ln)
        assert not side, (t, side)
    ST.stamp(12)

    def publish(fl):
        for jp in range(8):
            P = V_X + 4 * jp
            A = V_ACC + 8 * jp
            a(f"v_cvt_pk_bf16_f32 v{P}, v{A}, v{A+1}")
            a(f"v_cvt_pk_bf16_f32 v{P+1}, v{A+2}, v{A+3}")
            a(f"v_cvt_pk_bf16_f32 v{P+2}, v{A+4}, v{A+5}")
            a(f"v_cvt_pk_bf16_f32 v{P+3}, v{A+6}, v{A+7}")
            a(f"buffer_store_dwordx4 {vr(P, 4)}, v6, s[28:31], s55 offen offset:{jp*256}{fl}")

    a("s_cmp_eq_u32 s61, 1")
    a("s_cbranch_scc0 L_PUBSLOW")
    publish("")
    ST.stamp(13)

    a.label("L_TAIL")
    inbox_base()
    a("s_add_u32 s57, s56, 4096")
    a("s_add_u32 s58, s56, 8192")
    a("s_add_u32 s59, s56, 12288")
    a("s_lshl_b32 s48, s42, 7")
    a("s_lshl_b32 s49, s47, 3")
    a("s_add_u32 s48, s48, s49")
    a("s_lshl_b32 s60, s46, 10")
    a("s_lshr_b32 s49, s47, 2")
    a("s_lshl_b32 s49, s49, 8")
    a("s_add_u32 s60, s60, s49")
    a("s_lshr_b32 s49, s40, 2")
    a("s_lshl_b32 s49, s49, 7")
    a("s_add_u32 s60, s60, s49")
    a(f"s_add_u32 s60, s60, {FLAG_OFF}")
    a("v_and_b32 v4, 7, v0")
    a("v_lshlrev_b32 v16, 5, v4")
    a("v_lshlrev_b32 v4, 2, v4")
    a("v_bfe_u32 v3, v0, 5, 1")
    a("v_and_b32 v1, 31, v0")
    a("v_lshlrev_b32 v1, 4, v1")
    a("v_lshl_add_u32 v1, v3, 14, v1")
    a("s_lshl_b32 s49, s40, 9")
    a("v_add_u32 v1, s49, v1")
    a("v_and_b32 v2, 15, v0")
    a("v_lshl_add_u32 v2, v2, 4, v3")
    a("v_bfe_u32 v3, v0, 4, 1")
    a("v_lshl_add_u32 v2, v3, 1, v2")
    a("s_lshr_b32 s49, s40, 2")
    a("s_lshl_b32 s49, s49, 8")
    a("s_lshl_b32 s50, s45, 2")
    a("s_add_u32 s49, s49, s50")
    a("v_add_u32 v2, s49, v2")
    a("s_movk_i32 s49, 485")
    a("v_cmp_gt_u32 s[24:25], s49, v2")
    a("s_mul_i32 s49, s43, 485")
    a("v_add_u32 v2, s49, v2")
    a("v_lshlrev_b32 v2, 10, v2")
    a("v_add_u32 v2, s48, v2")
    a("v_lshrrev_b32 v5, 3, v0")
    a("v_lshlrev_b32 v5, 2, v5")
    a(f"v_add_u32 v5, {TL}, v5")
    a("v_bfe_u32 v7, v0, 3, 3")
    a("v_lshl_add_u32 v56, v7, 2, v16")
    a(f"v_add_u32 v56, {TL}, v56")
    c1 = -2.0 * 1.4426950408889634 * 0.7978845608028654
    c2 = c1 * 0.044715
    a(f"v_mov_b32 v52, {f2u(c1):#x}")
    a(f"v_mov_b32 v53, {f2u(c1):#x}")
    a(f"s_mov_b32 s20, {f2u(c2):#x}")
    a(f"s_mov_b32 s21, {f2u(c2):#x}")
    a("s_mov_b32 s22, 1.0")
    a("s_mov_b32 s23, 1.0")
    a(f"s_mov_b32 s26, {f2u(1.0/485.0):#x}")
    a(f"s_mov_b32 s63, {SPIN_LIMIT}")
    a("s_waitcnt lgkmcnt(0)")
    a("s_lshl_b32 s4, s8, 16")
    a("s_and_b32 s5, s8, 0xffff0000")
    a("s_lshl_b32 s6, s9, 16")
    a("s_and_b32 s7, s9, 0xffff0000")
    a("s_mov_b32 vcc_lo, 0")
    a("s_mov_b32 vcc_hi, -1")
    a("v_mov_b32 v50, s10")
    a("v_mov_b32 v54, s11")
    a("v_mov_b32 v51, s12")
    a("v_mov_b32 v55, s13")
    a("v_cndmask_b32 v50, v50, v54, vcc")
    a("v_cndmask_b32 v51, v51, v55, vcc")
    a("s_mov_b32 vcc_lo, 0xffff0000")
    a("s_mov_b32 vcc_hi, 0xffff0000")
    a("v_lshlrev_b32 v54, 16, v50")
    a("v_lshlrev_b32 v55, 16, v51")
    a("v_and_b32 v50, 0xffff0000, v50")
    a("v_and_b32 v51, 0xffff0000, v51")
    a("v_cndmask_b32 v50, v54, v50, vcc")
    a("v_cndmask_b32 v51, v55, v51, vcc")
    a("s_mov_b32 s27, 0xffff0000")
    D = 128
    a("s_cmp_eq_u32 s61, 1")
    a("s_cbranch_scc0 L_TAILSLOW")

    def poll(tag, fflag, sleep):
        a("s_cmp_ge_u32 s40, 4")
        a(f"s_cbranch_scc1 L_NOFLAG{tag}")
        a("s_waitcnt vmcnt(0)")
        a(f"buffer_store_dword v8, v9, s[28:31], s62 offen{fflag}")
        a.label(f"L_NOFLAG{tag}")
        a("s_barrier")
        ST.stamp(14)
        a.label(f"L_POLL{tag}")
        a("buffer_load_dword v60, v4, s[28:31], s60 offen sc1")
        a("s_sub_u32 s63, s63, 1")
        a("s_waitcnt vmcnt(0)")
        a("v_cmp_ne_u32 vcc, 1, v60")
        a("s_cmp_eq_u64 vcc, 0")
        a("s_cbranch_scc1 L_GOT")
        a("s_cmp_eq_u32 s63, 0")
        a("s_cbranch_scc1 L_GOT")
        if sleep:
            a(f"s_sleep {sleep}")
        a(f"s_branch L_POLL{tag}")

    poll("FAST", "", opt.get("psleep", 0))
    a.label("L_GOT")
    ST.stamp(15)
    for q in range(4):
        a(f"buffer_load_dwordx4 {vr(D+4*q,4)}, v1, s[28:31], s{56+q} offen sc1")
    for q in range(4):
        a(f"s_waitcnt vmcnt({3-q})")
        if q == 3:
            ST.stamp(10)
        T = 16 if q == 0 else 24
        for k in range(4):
            a(f"v_lshlrev_b32 v{T+2*k}, 16, v{D+4*q+k}")
            a(f"v_and_b32 v{T+2*k+1}, s27, v{D+4*q+k}")
        if q:
            for k in range(4):
                a(f"v_pk_add_f32 v[{16+2*k}:{17+2*k}], v[{16+2*k}:{17+2*k}], v[{24+2*k}:{25+2*k}]")
    a("s_nop 1")
    for r in range(4):
        a(f"v_permlane32_swap_b32 v{16+r}, v{20+r}")
    a("v_pk_add_f32 v[16:17], v[16:17], v[20:21]")
    a("v_pk_add_f32 v[18:19], v[18:19], v[22:23]")
    a("v_pk_add_f32 v[16:17], v[16:17], s[4:5]")
    a("v_pk_add_f32 v[18:19], v[18:19], s[6:7]")
    for r in range(4):
        a(f"v_cndmask_b32 v{20+r}, 0, v{16+r}, s[24:25]")
    a("v_pk_mul_f32 v[24:25], v[20:21], v[20:21]")
    a("v_pk_mul_f32 v[26:27], v[22:23], v[22:23]")
    a("v_permlane32_swap_b32 v20, v22")
    a("v_permlane32_swap_b32 v21, v23")
    a("v_permlane32_swap_b32 v24, v26")
    a("v_permlane32_swap_b32 v25, v27")
    a("v_add_f32 v20, v20, v22")
    a("v_add_f32 v21, v21, v23")
    a("v_add_f32 v24, v24, v26")
    a("v_add_f32 v25, v25, v27")
    a("s_nop 0")
    a("v_permlane16_swap_b32 v20, v21")
    a("v_permlane16_swap_b32 v24, v25")
    a("v_add_f32 v20, v20, v21")
    a("v_add_f32 v24, v24, v25")
    a("s_nop 0")
    a("v_add_f32_dpp v28, v20, v20 row_ror:8 row_mask:0xf bank_mask:0x3")
    a("v_add_f32_dpp v28, v24, v24 row_ror:8 row_mask:0xf bank_mask:0xc")

    def red8(r):
        for mod in ("row_half_mirror", "quad_perm:[1,0,3,2]", "quad_perm:[2,3,0,1]"):
            a("s_nop 1")
            a(f"v_add_f32_dpp v{r}, v{r}, v{r} {mod} row_mask:0xf bank_mask:0xf")

    red8(28)
    a("ds_write_b32 v5, v28")
    a("s_waitcnt lgkmcnt(0)")
    a("s_barrier")
    a("ds_read_b32 v28, v56")
    a("s_waitcnt lgkmcnt(0)")
    a("v_mul_f32 v28, s26, v28")
    red8(28)
    a("s_nop 1")
    a("v_mov_b32_dpp v29, v28 row_ror:8 row_mask:0xf bank_mask:0xf")
    a("v_fma_f32 v29, -v28, v28, v29")
    a("v_max_f32 v29, 0, v29")
    a(f"v_add_f32 v29, {f2u(1e-5):#x}, v29")
    a("v_rsq_f32 v29, v29")
    a("s_nop 0")
    a("v_mul_f32 v29, v50, v29")
    a("v_fma_f32 v28, -v28, v29, v51")
    for r in range(4):
        a(f"v_readlane_b32 s{48+r}, v29, {16*r}")
    for r in range(4):
        a(f"v_readlane_b32 s{52+r}, v28, {16*r}")
    a("v_pk_mul_f32 v[16:17], v[16:17], s[48:49]")
    a("v_pk_mul_f32 v[18:19], v[18:19], s[50:51]")
    a("v_pk_add_f32 v[16:17], v[16:17], s[52:53]")
    a("v_pk_add_f32 v[18:19], v[18:19], s[54:55]")
    a("v_pk_mul_f32 v[20:21], v[16:17], v[16:17]")
    a("v_pk_mul_f32 v[22:23], v[18:19], v[18:19]")
    a("v_pk_fma_f32 v[20:21], v[20:21], s[20:21], v[52:53]")
    a("v_pk_fma_f32 v[22:23], v[22:23], s[20:21], v[52:53]")
    a("v_pk_mul_f32 v[20:21], v[20:21], v[16:17]")
    a("v_pk_mul_f32 v[22:23], v[22:23], v[18:19]")
    for r in range(4):
        a(f"v_exp_f32 v{20+r}, v{20+r}")
    a("s_nop 0")
    a("v_pk_add_f32 v[20:21], v[20:21], s[22:23]")
    a("v_pk_add_f32 v[22:23], v[22:23], s[22:23]")
    for r in range(4):
        a(f"v_rcp_f32 v{20+r}, v{20+r}")
    a("s_nop 0")
    a("v_pk_mul_f32 v[16:17], v[16:17], v[20:21]")
    a("v_pk_mul_f32 v[18:19], v[18:19], v[22:23]")
    a("v_cvt_pk_bf16_f32 v8, v16, v17")
    a("v_cvt_pk_bf16_f32 v9, v18, v19")
    a("s_and_saveexec_b64 s[26:27], s[24:25]")
    a("s_cbranch_execz L_FIN")
    a("buffer_store_dwordx2 v[8:9], v2, s[36:39], 0 offen")
    a.label("L_FIN")
    if opt.get("fixed"):
        if "fixedwg" in opt:
            a(f"s_cmp_eq_u32 s2, {opt['fixedwg']}")
            a("s_cbranch_scc0 L_END0")
        a("s_waitcnt vmcnt(0)")
        a.label("L_FIX")
        a("s_memrealtime s[66:67]")
        a("s_waitcnt lgkmcnt(0)")
        a("s_sub_u32 s66, s66, s64")
        a(f"s_cmp_lt_u32 s66, {opt['fixed']}")
        a("s_cbranch_scc1 L_FIX")
    if ST.on:
        a("s_mov_b64 exec, -1")
        ST.stamp(11)
        a("s_waitcnt vmcnt(0)")
        a("s_cmp_ge_u32 s40, 4")
        a("s_cbranch_scc0 L_ST2")
        ST.stamp(7)
        a.label("L_ST2")
        a("s_barrier")
        ST.dump(18, 40)
    a("s_endpgm")

    a.label("L_PUBSLOW")
    publish(" sc1")
    a("s_branch L_TAIL")
    a.label("L_TAILSLOW")
    poll("SLOW", " sc1", 8)

    a.label("L_LOADLOOP")
    a("s_mov_b32 s20, s4")
    a("s_and_b32 s21, s5, 0xffff")
    other_srds()
    a("s_lshl_b32 s58, s46, 10")
    a(f"s_add_u32 s58, s58, {FLAG_OFF}")
    for r in range(40, 44):
        a(f"v_mov_b32 v{r}, 0")
    a("v_lshlrev_b32 v49, 4, v2")
    a("s_cmp_eq_u32 s47, 0")
    a("s_cselect_b32 s55, 2, 1")
    a("s_cmp_eq_u32 s40, 4")
    a("s_cselect_b32 s55, s55, 0")
    a("s_cmp_eq_u32 s55, 2")
    a("s_cbranch_scc0 L_NORESET")
    a("buffer_store_dwordx4 v[40:43], v49, s[28:31], s58 offen sc1")
    a.label("L_NORESET")
    reset_pos = len(vq)
    gb_loads()
    srd(a, 32, 16, 17, 256)
    flag_addr()
    inbox_base()
    a("s_lshl_b32 s60, s46, 4")
    a("v_lshlrev_b32 v42, 7, v2")
    a("s_lshl_b32 s57, s45, 13")
    a("s_add_u32 s57, s57, s56")
    a("s_getreg_b32 s48, hwreg(HW_REG_XCC_ID, 0, 4)")
    a("s_or_b32 s48, s48, 0x10")
    a("v_mov_b32 v41, s48")
    a("s_lshl_b32 s59, s47, 2")
    a("s_add_u32 s59, s59, s58")
    a("v_and_b32 v50, 15, v2")
    a("v_lshlrev_b32 v50, 2, v50")

    def lwait(tags):
        idx = max(k for k, tg in enumerate(vq) if tg in tags)
        n = len(vq) - 1 - idx
        assert n <= 63
        a(f"s_waitcnt vmcnt({n})")

    def one_lane(ins):
        a("s_mov_b64 exec, 1")
        a(ins)
        a("s_mov_b64 exec, -1")

    nu = N0
    ST.stamp(2)
    lwait([("w", 0)])
    ST.stamp(3)
    a("s_barrier")
    ST.stamp(4)
    ST.cstamp(8)
    N_RDY = opt.get("nrdy", 1)
    N_RL = opt.get("nrl", 4)
    N_XCC = N_RL + 3
    N_CHK = opt.get("nchk", N_XCC + 3)
    N_MODE = N_CHK + 3
    N_TOUCH = opt.get("ntouch", N_MODE + 1)
    TSTEP = opt.get("tstep", 2)
    xq = list(range(9))
    X1 = opt.get("x1", 1)
    pos = {}
    for n in range(30):
        umax = min(NS - 1, 2 * n - 1 + RING_UNITS, 2 * n + 1 + LA)
        k = 0
        while nu <= umax and k < PER:
            w_unit(nu); nu += 1; k += 1
        assert nu >= min(NS, 2 * (n + 2)), (n, nu)
        if n >= X1:
            for _ in range(opt.get("xper", 2)):
                if xq:
                    x_piece(1, xq.pop(0)); vq.append("x1")
        if n == N_RDY:
            a("s_cmp_eq_u32 s55, 2")
            a("s_cbranch_scc0 L_NORDY")
            a(f"s_waitcnt vmcnt({len(vq) - reset_pos})")
            one_lane("buffer_store_dword v41, v40, s[32:35], s60 offen sc1")
            a.label("L_NORDY")
        if n == N_RL:
            a("s_cmp_eq_u32 s55, 0")
            a("s_cbranch_scc1 L_NORL")
            one_lane("buffer_load_dword v44, v40, s[32:35], s60 offen sc1")
            a.label("L_NORL")
            pos["rl"] = len(vq)
        if n == N_XCC:
            a("s_cmp_eq_u32 s55, 0")
            a("s_cbranch_scc1 L_NOXCC")
            a(f"s_waitcnt vmcnt({len(vq) - pos['rl']})")
            a(f"s_mov_b32 s63, {SPIN_LIMIT}")
            a.label("L_RCHK")
            a("v_readfirstlane_b32 s48, v44")
            a("s_cmp_lg_u32 s48, 0")
            a("s_cbranch_scc1 L_ROK")
            a("s_sub_u32 s63, s63, 1")
            a("s_cmp_eq_u32 s63, 0")
            a("s_cbranch_scc1 L_ROK")
            a("s_sleep 4")
            one_lane("buffer_load_dword v44, v40, s[32:35], s60 offen sc1")
            a("s_waitcnt vmcnt(0)")
            a("s_branch L_RCHK")
            a.label("L_ROK")
            one_lane("buffer_store_dword v41, v40, s[28:31], s59 offen offset:64 sc1")
            a.label("L_NOXCC")
        if n == N_CHK:
            a("s_cmp_eq_u32 s55, 0")
            a("s_cbranch_scc1 L_NOCHK")
            a("buffer_load_dword v44, v50, s[28:31], s58 offen offset:64 sc1")
            a.label("L_NOCHK")
            pos["chk"] = len(vq)
        if n == N_MODE:
            a("s_cmp_eq_u32 s55, 0")
            a("s_cbranch_scc1 L_NOMODE")
            a(f"s_waitcnt vmcnt({len(vq) - pos['chk']})")
            a(f"s_mov_b32 s63, {SPIN_LIMIT}")
            a.label("L_HCHK")
            a("v_cmp_eq_u32 vcc, 0, v44")
            a("s_cmp_eq_u64 vcc, 0")
            a("s_cbranch_scc1 L_HOK")
            a("s_sub_u32 s63, s63, 1")
            a("s_cmp_eq_u32 s63, 0")
            a("s_cbranch_scc1 L_HOK")
            a("s_sleep 4")
            a("buffer_load_dword v44, v50, s[28:31], s58 offen offset:64 sc1")
            a("s_waitcnt vmcnt(0)")
            a("s_branch L_HCHK")
            a.label("L_HOK")
            a("v_cmp_ne_u32 vcc, v41, v44")
            a("s_cmp_eq_u64 vcc, 0")
            a("s_cselect_b32 s61, 1, 0")
            if opt.get("forceslow"):
                a("s_mov_b32 s61, 0")
            a("v_mov_b32 v10, s61")
            a(f"v_mov_b32 v11, {MODE_LDS}")
            a("ds_write_b32 v11, v10")
            a("s_waitcnt lgkmcnt(0)")
            a.label("L_NOMODE")
        if n == N_MODE + 1:
            a(f"v_mov_b32 v11, {MODE_LDS}")
            a("ds_read_b32 v10, v11")
            a("s_waitcnt lgkmcnt(0)")
            a("v_readfirstlane_b32 s61, v10")
            a("s_lshl_b32 s49, s61, 2")
            a("s_add_u32 s55, s49, s45")
        if opt.get("touch", 1):
            for w in range(4):
                if n == N_TOUCH + TSTEP * w:
                    a(f"s_cmp_eq_u32 s55, {4 + w}")
                    a(f"s_cbranch_scc0 L_NOTOUCH{w}")
                    one_lane("buffer_load_dword v43, v40, s[28:31], s62 offen")
                    a("buffer_load_dword v48, v42, s[28:31], s57 offen")
                    a.label(f"L_NOTOUCH{w}")
        need = [("w", n + 1)]
        if n + 1 == plane_avail[1]:
            assert not xq
            need.append("x1")
        lwait(need)
        a("s_barrier")
    assert nu == NS
    assert N_MODE < B_MODE and N_TOUCH > N_MODE and N_TOUCH + 3 * TSTEP < 30
    ST.stamp(5)
    ST.cstamp(9)
    if ST.on:
        a("s_getreg_b32 s76, hwreg(HW_REG_XCC_ID)")
        a("s_add_u32 s76, s76, 1000")
    a("s_branch L_TAIL")
    return NV


def main():
    opt = {}
    for arg in sys.argv[2:]:
        k, v = arg.split("=")
        opt[k] = int(v)
    a = Asm()
    nv = gen(a, opt)
    out = HEADER
    out += f"; @launch grid=(256,1,1) block=(512,1,1) lds={LDS_BYTES}\n"
    out += '.amdgcn_target "amdgcn-amd-amdhsa--gfx950"\n.text\n'
    out += a.text()
    out += '.section .rodata,"a"\n'
    out += kd(KNAME, nv, 102 if (opt.get("stamps") or opt.get("fixed")) else 64)
    open(sys.argv[1], "w").write(out)


if __name__ == "__main__":
    main()
```

```python
import sys, struct
from gen2 import Asm, vr, srd, Stamps, kd, HEADER, KNAME, f2u

PASSES = [(0, 0), (1, 0), (0, 1), (1, 1)]
J = 16
W_BYTES = 31 * 512 * 512 * 2
OUT_BYTES = 2 * 485 * 512 * 2
EX_BYTES = 256 * 32768
FLAG_OFF = EX_BYTES
WS_BYTES = EX_BYTES + 16 * 1024
PLANE = 34 * 1024
XLDS = 2 * PLANE
RING_UNITS = 22
HALF = 11
RING_BASE = XLDS
MODE_LDS = XLDS + RING_UNITS * 4096
TL = MODE_LDS + 256
LDS_BYTES = MODE_LDS + 512
SPIN_LIMIT = 40000


def steps_list():
    st = []
    for cb, p in PASSES:
        for i in range(16 - p):
            st.append((cb, p, i, 2 * i + p))
    return st


def gen(a, opt):
    RX = 32
    ST = Stamps(a, opt.get("stamps", 0))
    if "probe" in opt:
        class P:
            on = False
            def init(self): pass
            def cstamp(self, i): pass
            def dump(self, *x): pass
            def stamp(self, i):
                if i == opt["probe"] and not loader_ctx[0]:
                    a("s_memrealtime s[64:65]")
        ST = P()
        opt["fixed"] = 3000
    loader_ctx = [False]
    V_ACC = 16
    V_W = 80
    V_X = 88
    V_XA = V_X + 4 * RX
    V_WA = V_XA + 8
    NV = V_WA + 2
    st = steps_list()
    NS = len(st)
    N0 = opt.get("n0", 4)
    PER = opt.get("per", 3)
    LA = opt.get("la", 20)
    opt.setdefault("per", 3); opt.setdefault("x1", 3); opt.setdefault("cbswap", 0)

    a.raw(f".globl {KNAME}")
    a.raw(".p2align 8")
    a.raw(f".type {KNAME},@function")
    a.label(KNAME)
    a("s_cmp_ge_u32 s2, 256")
    a("s_cbranch_scc1 L_END0")
    ST.init()
    ST.stamp(0)
    if opt.get("fixed"):
        a("s_memrealtime s[64:65]")
    a("s_load_dwordx8 s[4:11], s[0:1], 0")
    a("s_load_dwordx8 s[12:19], s[0:1], 32")
    a("v_lshrrev_b32 v1, 6, v0")
    a("v_and_b32 v2, 63, v0")
    if opt.get("map", 1) == 0:
        a("s_and_b32 s42, s2, 7")
        a("v_readfirstlane_b32 s40, v1")
        a("s_bfe_u32 s47, s2, 0x40003")
        a("s_lshr_b32 s43, s2, 7")
    else:
        a("s_and_b32 s42, s2, 3")
        a("v_readfirstlane_b32 s40, v1")
        a("s_lshl_b32 s42, s42, 1")
        a("s_lshr_b32 s48, s2, 7")
        a("s_add_u32 s42, s42, s48")
        a("s_bfe_u32 s47, s2, 0x40003")
        a("s_bfe_u32 s43, s2, 0x10002")
    a("s_and_b32 s41, s47, 7")
    a("s_lshr_b32 s44, s47, 3")
    a("s_and_b32 s45, s40, 3")
    a("s_lshl_b32 s46, s43, 3")
    a("s_add_u32 s46, s46, s42")
    a("s_mul_i32 s52, s43, 1024000")
    a("s_lshl_b32 s48, s44, 19")
    a("s_add_u32 s52, s52, s48")
    a("s_lshl_b32 s48, s41, 7")
    a("s_add_u32 s52, s52, s48")
    a("s_lshl_b32 s48, s45, 15")
    a("s_add_u32 s50, s52, s48")
    a("s_lshl_b32 s51, s45, 11")
    a("s_and_b32 s48, s42, %d" % (1 if opt.get("xswap", 1) else 0))
    a("s_lshl_b32 s49, s48, 18")
    a("s_add_u32 s60, s50, s49")
    a("s_xor_b32 s49, s49, 0x40000")
    a("s_add_u32 s50, s50, s49")
    a("s_lshl_b32 s49, s48, 14")
    a("s_add_u32 s61, s51, s49")
    a("s_xor_b32 s49, s49, 0x4000")
    a("s_add_u32 s51, s51, s49")
    a("s_and_b32 s48, s45, 1")
    a("s_add_u32 s48, s48, 32")
    a("s_lshl_b32 s53, s48, 10")
    a("s_lshl_b32 s48, s48, 14")
    a("s_add_u32 s52, s52, s48")
    a("v_lshrrev_b32 v3, 4, v2")
    a("v_lshlrev_b32 v3, 12, v3")
    a("v_bfe_u32 v4, v2, 3, 1")
    a("v_lshl_add_u32 v3, v4, 11, v3")
    a("v_and_b32 v4, 7, v2")
    a("v_lshl_add_u32 v6, v4, 4, v3")
    a("s_lshl_b32 s48, s45, 5")
    a("v_xor_b32 v4, s48, v6")
    a("v_xor_b32 v5, 0x800, v4")
    a("s_add_u32 s48, s43, 1")
    a("s_mul_i32 s22, s48, 1024000")
    a("s_mov_b32 s23, 0x20000")
    a("s_cmp_ge_u32 s40, 4")
    a("s_cbranch_scc0 L_COMPUTE")
    if opt.get("cpf", 1):
        a("s_getpc_b64 s[56:57]")
        a.label("L_PC")
        a("s_lshr_b32 s48, s2, 3")
        a("s_lshl_b32 s48, s48, 2")
        a("s_add_u32 s48, s48, s45")
        a("s_lshl_b32 s48, s48, 7")
        a("s_min_u32 s48, s48, L_CODE_END-L_PC-4")
        a("v_mov_b32 v11, s48")
        a("s_mov_b64 exec, 1")
        a("global_load_dword v12, v11, s[56:57]")
        a("s_mov_b64 exec, -1")

    XB = [60, 61]

    def x_piece(p, k):
        if k < 8:
            i, e = (k >> 1) & 1, k & 1
            sl, ss = (XB[1], XB[0]) if k < 4 else (51, 50)
            a(f"s_add_u32 m0, s{sl}, {p*PLANE + i*8192 + e*1024}")
            a(f"s_add_u32 s48, s{ss}, {p*1024 + i*131072 + e*16384}")
            a(f"buffer_load_dwordx4 v{4 + (i & 1)}, s[20:23], s48 offen lds")
        else:
            a(f"s_add_u32 m0, s53, {p*PLANE}")
            a(f"s_add_u32 s48, s52, {p*1024}")
            a("buffer_load_dwordx4 v6, s[20:23], s48 offen lds")

    def gb_loads():
        a("s_lshl_b32 s48, s42, 7")
        a("s_lshl_b32 s49, s47, 3")
        a("s_add_u32 s48, s48, s49")
        a("s_load_dwordx2 s[8:9], s[8:9], s48")
        a("s_load_dwordx2 s[10:11], s[10:11], s48")
        a("s_load_dwordx2 s[12:13], s[12:13], s48")

    def other_srds():
        srd(a, 28, 18, 19, WS_BYTES)
        srd(a, 36, 14, 15, OUT_BYTES)

    def flag_addr():
        a("s_lshl_b32 s62, s46, 10")
        a("s_lshl_b32 s48, s45, 8")
        a("s_add_u32 s62, s62, s48")
        a("s_lshl_b32 s48, s44, 7")
        a("s_add_u32 s62, s62, s48")
        a("s_lshl_b32 s48, s41, 2")
        a("s_add_u32 s62, s62, s48")
        a(f"s_add_u32 s62, s62, {FLAG_OFF}")

    def inbox_base():
        a("s_lshl_b32 s56, s46, 4")
        a("s_add_u32 s56, s56, s47")
        a("s_lshl_b32 s56, s56, 15")

    loader_ctx[0] = True
    a("v_lshrrev_b32 v8, 3, v2")
    a("s_lshl_b32 s48, s45, 3")
    a("v_add_u32 v8, s48, v8")
    a("v_lshlrev_b32 v8, 10, v8")
    a("v_bfe_u32 v9, v2, 4, 1")
    a("s_and_b32 s48, s45, 1")
    a("s_lshl_b32 s48, s48, 1")
    a("v_or_b32 v9, s48, v9")
    a("v_lshlrev_b32 v9, 1, v9")
    a("v_and_b32 v10, 7, v2")
    a("v_xor_b32 v9, v9, v10")
    a("v_lshl_add_u32 v8, v9, 4, v8")
    a("s_lshl_b32 s48, s42, 7")
    a("s_lshl_b32 s49, s41, 16")
    a("s_add_u32 s48, s48, s49")
    a("v_add_u32 v8, s48, v8")
    if opt.get("cbswap", 1):
        a("s_lshl_b32 s48, s44, 15")
        a("v_add_u32 v8, s48, v8")
    a("v_xor_b32 v9, 0x8000, v8")
    a("s_lshl_b32 s54, s45, 10")
    a(f"s_add_u32 s54, s54, {RING_BASE}")
    a("s_mov_b32 s26, %d" % W_BYTES)
    a("s_mov_b32 s27, 0x20000")
    a("s_waitcnt lgkmcnt(0)")
    ST.stamp(1)
    a("s_mov_b32 s24, s6")
    a("s_and_b32 s25, s7, 0xffff")
    vq = []

    def w_unit(u):
        cb, p, i, tap = st[u]
        a(f"s_add_u32 m0, s54, {(u % RING_UNITS) * 4096}")
        a(f"s_mov_b32 s48, {tap * 524288}")
        a(f"buffer_load_dwordx4 v{8 + cb}, s[24:27], s48 offen lds")
        vq.append(("w", u // 2))

    a("s_mov_b32 s20, s4")
    a("s_and_b32 s21, s5, 0xffff")
    XL = opt.get("xl", 1)
    w_unit(0); w_unit(1)
    if XL:
        for k in range(4, 9):
            x_piece(0, k); vq.append("x0")
    for u in range(2, N0):
        w_unit(u)
    a("s_mov_b32 s34, s60")
    a("s_mov_b32 s35, s61")
    a("s_branch L_LOADLOOP")
    a.label("L_END0")
    a("s_endpgm")

    loader_ctx[0] = False
    a.label("L_COMPUTE")
    a("v_and_b32 v3, 15, v2")
    a("v_lshrrev_b32 v1, 4, v2")
    for d in range(2):
        a(f"v_add_u32 v7, {d}, v3")
        a("v_and_b32 v7, 7, v7")
        a("v_lshlrev_b32 v7, 1, v7")
        a("v_xor_b32 v7, v1, v7")
        a("v_lshlrev_b32 v7, 4, v7")
        a(f"v_lshl_add_u32 v{V_XA + 4*d}, v3, 11, v7")
        if opt.get("cbswap", 1):
            a("s_lshl_b32 s48, s44, 6")
            a(f"v_xor_b32 v{V_XA + 4*d}, s48, v{V_XA + 4*d}")
    a("s_waitcnt lgkmcnt(0)")
    ST.stamp(1)
    a("s_mov_b32 s20, s4")
    a("s_and_b32 s21, s5, 0xffff")
    for k in range(4 if XL else 9):
        x_piece(0, k)
    gb_loads()
    other_srds()
    for d in range(2):
        for z in range(1, 4):
            a(f"v_xor_b32 v{V_XA + 4*d + z}, {z << 6}, v{V_XA + 4*d}")
    a("v_lshrrev_b32 v4, 2, v3")
    a("v_lshl_add_u32 v4, v1, 3, v4")
    a("v_lshlrev_b32 v4, 7, v4")
    a("v_lshrrev_b32 v5, 3, v3")
    a("v_and_b32 v6, 1, v1")
    a("v_lshl_or_b32 v5, v6, 1, v5")
    a("v_xor_b32 v5, s40, v5")
    a("v_lshl_add_u32 v4, v5, 5, v4")
    a("v_and_b32 v5, 3, v3")
    a("v_lshl_add_u32 v4, v5, 3, v4")
    a(f"v_add_u32 v{V_WA}, {RING_BASE}, v4")
    a(f"v_add_u32 v{V_WA+1}, {RING_BASE + HALF*4096}, v4")
    a("s_lshl_b32 s48, s40, 2")
    a("v_add_u32 v6, s48, v1")
    a("v_lshlrev_b32 v6, 15, v6")
    a("v_lshl_add_u32 v6, v3, 4, v6")
    a("s_lshl_b32 s55, s46, 19")
    a("s_lshl_b32 s48, s41, 12")
    a("s_add_u32 s55, s55, s48")
    a("s_lshl_b32 s48, s44, 11")
    a("s_add_u32 s55, s55, s48")
    flag_addr()
    a("v_mov_b32 v8, 1")
    a("v_mov_b32 v9, 0")
    a(f"v_mov_b32 v7, {MODE_LDS}")
    a("s_waitcnt vmcnt(0)")
    ST.stamp(2)
    a("s_barrier")
    ST.stamp(3)

    frags = []
    pass_off = {}
    for cb, p in PASSES:
        pass_off[(cb, p)] = len(frags)
        for f in range(16 - p + J - 1):
            frags.append((cb, p, f))
    lds_q = []
    plane_avail = {0: 0, 1: opt.get("av1", 11)}
    bars_done = [0]
    B_MODE = opt.get("bmode", 24)

    def issue_x(F):
        cb, p, f = frags[F]
        d = f >> 4
        z = (f & 1) * 2 + cb
        r = V_X + 4 * (F % RX)
        assert bars_done[0] >= plane_avail[p]
        a(f"ds_read_b128 {vr(r,4)}, v{V_XA + 4*d + z} offset:{p*PLANE + (f>>1)*256}")
        lds_q.append(("x", F))

    def issue_w(t, h):
        u = t % RING_UNITS
        off = (u % HALF) * 4096 + h * 512
        r = V_W + 4 * (t % 2) + 2 * h
        assert bars_done[0] >= t // 2
        a(f"ds_read_b64_tr_b16 {vr(r,2)}, v{V_WA + u // HALF} offset:{off}")
        lds_q.append(("w", t, h))

    waited = [-1]

    def wait_for(tags):
        idx = max(lds_q.index(tg) for tg in tags)
        if idx <= waited[0]:
            return
        n = len(lds_q) - 1 - idx
        if n > 15:
            n = 15
            idx = len(lds_q) - 1 - n
        a(f"s_waitcnt lgkmcnt({n})")
        waited[0] = idx

    nx = 0
    issue_w(0, 0); issue_w(0, 1)
    for F in range(12):
        issue_x(F); nx += 1

    XPS = opt.get("xps", 3)
    T_MODE = 2 * B_MODE + 1
    for t in range(NS):
        cb, p, i, tap = st[t]
        off = pass_off[(cb, p)]
        fmin = off + i
        if t % 8 == 4 and t < 48:
            ST.stamp(4 + t // 8)
        side = []
        nb = bars_done[0]
        if (t + 1) % 2 == 0 and t + 1 < NS:
            side.append(("bar",))
            nb += 1
        xs = []
        tmp = nx
        lim = 8 if t == 0 else XPS
        while len(xs) < lim and tmp < len(frags) and tmp - fmin < RX and nb >= plane_avail[frags[tmp][1]]:
            xs.append(("x", tmp)); tmp += 1
        ws = [("w", t + 1, 0), ("w", t + 1, 1)] if t + 1 < NS else []
        side += (xs[:4] + ws + xs[4:]) if t == 0 else (ws + xs)
        if t == T_MODE:
            assert bars_done[0] >= B_MODE
            side.append(("mode",))
        if t == T_MODE + 2:
            wait_for([("mode",)])
            side.append(("raw", ["v_readfirstlane_b32 s61, v10"]))
        for j in range(J):
            acc = V_ACC + 4 * j
            xr = V_X + 4 * ((off + i + j) % RX)
            wr = V_W + 4 * (t % 2)
            c = "0" if t == 0 else vr(acc, 4)
            if t == 0:
                wait_for([("w", t, 0), ("w", t, 1), ("x", off + i + j)])
            elif j == 0:
                wait_for([("w", t, 0), ("w", t, 1)] + [("x", off + i + k) for k in range(J // 2)])
            elif j == J // 2:
                wait_for([("x", off + i + k) for k in range(J)])
            a(f"v_mfma_f32_16x16x32_bf16 {vr(acc,4)}, {vr(wr,4)}, {vr(xr,4)}, {c}")
            if side:
                s = side.pop(0)
                if s[0] == "bar":
                    a("s_barrier"); bars_done[0] += 1
                elif s[0] == "w":
                    issue_w(s[1], s[2])
                elif s[0] == "x":
                    issue_x(s[1]); nx += 1
                elif s[0] == "mode":
                    a("ds_read_b32 v10, v7")
                    lds_q.append(("mode",))
                else:
                    for ln in s[1]:
                        if ln.endswith(":"):
                            a.label(ln[:-1])
                        else:
                            a(ln)
        assert not side, (t, side)
    ST.stamp(12)

    def publish(fl):
        for jp in range(8):
            P = V_X + 4 * jp
            A = V_ACC + 8 * jp
            a(f"v_cvt_pk_bf16_f32 v{P}, v{A}, v{A+1}")
            a(f"v_cvt_pk_bf16_f32 v{P+1}, v{A+2}, v{A+3}")
            a(f"v_cvt_pk_bf16_f32 v{P+2}, v{A+4}, v{A+5}")
            a(f"v_cvt_pk_bf16_f32 v{P+3}, v{A+6}, v{A+7}")
            a(f"buffer_store_dwordx4 {vr(P, 4)}, v6, s[28:31], s55 offen offset:{jp*256}{fl}")

    a("s_cmp_eq_u32 s61, 1")
    a("s_cbranch_scc0 L_PUBSLOW")
    publish({0: "", 2: " nt", 4: " sc0", 6: " sc0 nt"}[opt.get("sflag", 0)])
    ST.stamp(13)

    a.label("L_TAIL")
    inbox_base()
    a("s_add_u32 s57, s56, 4096")
    a("s_add_u32 s58, s56, 8192")
    a("s_add_u32 s59, s56, 12288")
    a("s_lshl_b32 s48, s42, 7")
    a("s_lshl_b32 s49, s47, 3")
    a("s_add_u32 s48, s48, s49")
    a("s_lshl_b32 s60, s46, 10")
    a("s_lshr_b32 s49, s47, 2")
    a("s_lshl_b32 s49, s49, 8")
    a("s_add_u32 s60, s60, s49")
    a("s_lshr_b32 s49, s40, 2")
    a("s_lshl_b32 s49, s49, 7")
    a("s_add_u32 s60, s60, s49")
    a(f"s_add_u32 s60, s60, {FLAG_OFF}")
    a("v_and_b32 v4, 7, v0")
    a("v_lshlrev_b32 v16, 5, v4")
    a("v_lshlrev_b32 v4, 2, v4")
    a("v_bfe_u32 v3, v0, 5, 1")
    a("v_and_b32 v1, 31, v0")
    a("v_lshlrev_b32 v1, 4, v1")
    a("v_lshl_add_u32 v1, v3, 14, v1")
    a("s_lshl_b32 s49, s40, 9")
    a("v_add_u32 v1, s49, v1")
    a("v_and_b32 v2, 15, v0")
    a("v_lshl_add_u32 v2, v2, 4, v3")
    a("v_bfe_u32 v3, v0, 4, 1")
    a("v_lshl_add_u32 v2, v3, 1, v2")
    a("s_lshr_b32 s49, s40, 2")
    a("s_lshl_b32 s49, s49, 8")
    a("s_lshl_b32 s50, s45, 2")
    a("s_add_u32 s49, s49, s50")
    a("v_add_u32 v2, s49, v2")
    a("s_movk_i32 s49, 485")
    a("v_cmp_gt_u32 s[24:25], s49, v2")
    a("s_mul_i32 s49, s43, 485")
    a("v_add_u32 v2, s49, v2")
    a("v_lshlrev_b32 v2, 10, v2")
    a("v_add_u32 v2, s48, v2")
    a("v_lshrrev_b32 v5, 3, v0")
    a("v_lshlrev_b32 v5, 2, v5")
    a(f"v_add_u32 v5, {TL}, v5")
    a("v_bfe_u32 v7, v0, 3, 3")
    a("v_lshl_add_u32 v56, v7, 2, v16")
    a(f"v_add_u32 v56, {TL}, v56")
    c1 = -2.0 * 1.4426950408889634 * 0.7978845608028654
    c2 = c1 * 0.044715
    a(f"v_mov_b32 v52, {f2u(c1):#x}")
    a(f"v_mov_b32 v53, {f2u(c1):#x}")
    a(f"s_mov_b32 s20, {f2u(c2):#x}")
    a(f"s_mov_b32 s21, {f2u(c2):#x}")
    a("s_mov_b32 s22, 1.0")
    a("s_mov_b32 s23, 1.0")
    a(f"s_mov_b32 s26, {f2u(1.0/485.0):#x}")
    a(f"s_mov_b32 s63, {SPIN_LIMIT}")
    a("s_waitcnt lgkmcnt(0)")
    a("s_lshl_b32 s4, s8, 16")
    a("s_and_b32 s5, s8, 0xffff0000")
    a("s_lshl_b32 s6, s9, 16")
    a("s_and_b32 s7, s9, 0xffff0000")
    a("s_mov_b32 vcc_lo, 0")
    a("s_mov_b32 vcc_hi, -1")
    a("v_mov_b32 v50, s10")
    a("v_mov_b32 v54, s11")
    a("v_mov_b32 v51, s12")
    a("v_mov_b32 v55, s13")
    a("v_cndmask_b32 v50, v50, v54, vcc")
    a("v_cndmask_b32 v51, v51, v55, vcc")
    a("s_mov_b32 vcc_lo, 0xffff0000")
    a("s_mov_b32 vcc_hi, 0xffff0000")
    a("v_lshlrev_b32 v54, 16, v50")
    a("v_lshlrev_b32 v55, 16, v51")
    a("v_and_b32 v50, 0xffff0000, v50")
    a("v_and_b32 v51, 0xffff0000, v51")
    a("v_cndmask_b32 v50, v54, v50, vcc")
    a("v_cndmask_b32 v51, v55, v51, vcc")
    a("s_mov_b32 s27, 0xffff0000")
    D = 128
    a("s_cmp_eq_u32 s61, 1")
    a("s_cbranch_scc0 L_TAILSLOW")

    def poll(tag, fflag, sleep):
        a("s_cmp_ge_u32 s40, 4")
        a(f"s_cbranch_scc1 L_NOFLAG{tag}")
        a("s_waitcnt vmcnt(0)")
        a(f"buffer_store_dword v8, v9, s[28:31], s62 offen{fflag}")
        a.label(f"L_NOFLAG{tag}")
        a("s_barrier")
        ST.stamp(14)
        a.label(f"L_POLL{tag}")
        a("buffer_load_dword v60, v4, s[28:31], s60 offen sc1")
        a("s_sub_u32 s63, s63, 1")
        a("s_waitcnt vmcnt(0)")
        a("v_cmp_ne_u32 vcc, 1, v60")
        a("s_cmp_eq_u64 vcc, 0")
        a("s_cbranch_scc1 L_GOT")
        a("s_cmp_eq_u32 s63, 0")
        a("s_cbranch_scc1 L_GOT")
        if sleep:
            a(f"s_sleep {sleep}")
        a(f"s_branch L_POLL{tag}")

    poll("FAST", "", opt.get("psleep", 0))
    a.label("L_GOT")
    ST.stamp(15)
    for q in range(4):
        a(f"buffer_load_dwordx4 {vr(D+4*q,4)}, v1, s[28:31], s{56+q} offen sc1")
    for q in range(4):
        a(f"s_waitcnt vmcnt({3-q})")
        if q == 3:
            ST.stamp(10)
        T = 16 if q == 0 else 24
        for k in range(4):
            a(f"v_lshlrev_b32 v{T+2*k}, 16, v{D+4*q+k}")
            a(f"v_and_b32 v{T+2*k+1}, s27, v{D+4*q+k}")
        if q:
            for k in range(4):
                a(f"v_pk_add_f32 v[{16+2*k}:{17+2*k}], v[{16+2*k}:{17+2*k}], v[{24+2*k}:{25+2*k}]")
    a("s_nop 1")
    for r in range(4):
        a(f"v_permlane32_swap_b32 v{16+r}, v{20+r}")
    a("v_pk_add_f32 v[16:17], v[16:17], v[20:21]")
    a("v_pk_add_f32 v[18:19], v[18:19], v[22:23]")
    a("v_pk_add_f32 v[16:17], v[16:17], s[4:5]")
    a("v_pk_add_f32 v[18:19], v[18:19], s[6:7]")
    for r in range(4):
        a(f"v_cndmask_b32 v{20+r}, 0, v{16+r}, s[24:25]")
    a("v_pk_mul_f32 v[24:25], v[20:21], v[20:21]")
    a("v_pk_mul_f32 v[26:27], v[22:23], v[22:23]")
    a("v_permlane32_swap_b32 v20, v22")
    a("v_permlane32_swap_b32 v21, v23")
    a("v_permlane32_swap_b32 v24, v26")
    a("v_permlane32_swap_b32 v25, v27")
    a("v_add_f32 v20, v20, v22")
    a("v_add_f32 v21, v21, v23")
    a("v_add_f32 v24, v24, v26")
    a("v_add_f32 v25, v25, v27")
    a("s_nop 0")
    a("v_permlane16_swap_b32 v20, v21")
    a("v_permlane16_swap_b32 v24, v25")
    a("v_add_f32 v20, v20, v21")
    a("v_add_f32 v24, v24, v25")
    a("s_nop 0")
    a("v_add_f32_dpp v28, v20, v20 row_ror:8 row_mask:0xf bank_mask:0x3")
    a("v_add_f32_dpp v28, v24, v24 row_ror:8 row_mask:0xf bank_mask:0xc")

    def red8(r):
        for mod in ("row_half_mirror", "quad_perm:[1,0,3,2]", "quad_perm:[2,3,0,1]"):
            a("s_nop 1")
            a(f"v_add_f32_dpp v{r}, v{r}, v{r} {mod} row_mask:0xf bank_mask:0xf")

    red8(28)
    a("ds_write_b32 v5, v28")
    a("s_waitcnt lgkmcnt(0)")
    a("s_barrier")
    a("ds_read_b32 v28, v56")
    a("s_waitcnt lgkmcnt(0)")
    a("v_mul_f32 v28, s26, v28")
    red8(28)
    a("s_nop 1")
    a("v_mov_b32_dpp v29, v28 row_ror:8 row_mask:0xf bank_mask:0xf")
    a("v_fma_f32 v29, -v28, v28, v29")
    a("v_max_f32 v29, 0, v29")
    a(f"v_add_f32 v29, {f2u(1e-5):#x}, v29")
    a("v_rsq_f32 v29, v29")
    a("s_nop 0")
    a("v_mul_f32 v29, v50, v29")
    a("v_fma_f32 v28, -v28, v29, v51")
    for r in range(4):
        a(f"v_readlane_b32 s{48+r}, v29, {16*r}")
    for r in range(4):
        a(f"v_readlane_b32 s{52+r}, v28, {16*r}")
    a("v_pk_mul_f32 v[16:17], v[16:17], s[48:49]")
    a("v_pk_mul_f32 v[18:19], v[18:19], s[50:51]")
    a("v_pk_add_f32 v[16:17], v[16:17], s[52:53]")
    a("v_pk_add_f32 v[18:19], v[18:19], s[54:55]")
    a("v_pk_mul_f32 v[20:21], v[16:17], v[16:17]")
    a("v_pk_mul_f32 v[22:23], v[18:19], v[18:19]")
    a("v_pk_fma_f32 v[20:21], v[20:21], s[20:21], v[52:53]")
    a("v_pk_fma_f32 v[22:23], v[22:23], s[20:21], v[52:53]")
    a("v_pk_mul_f32 v[20:21], v[20:21], v[16:17]")
    a("v_pk_mul_f32 v[22:23], v[22:23], v[18:19]")
    for r in range(4):
        a(f"v_exp_f32 v{20+r}, v{20+r}")
    a("s_nop 0")
    a("v_pk_add_f32 v[20:21], v[20:21], s[22:23]")
    a("v_pk_add_f32 v[22:23], v[22:23], s[22:23]")
    for r in range(4):
        a(f"v_rcp_f32 v{20+r}, v{20+r}")
    a("s_nop 0")
    a("v_pk_mul_f32 v[16:17], v[16:17], v[20:21]")
    a("v_pk_mul_f32 v[18:19], v[18:19], v[22:23]")
    a("v_cvt_pk_bf16_f32 v8, v16, v17")
    a("v_cvt_pk_bf16_f32 v9, v18, v19")
    a("s_and_saveexec_b64 s[26:27], s[24:25]")
    a("s_cbranch_execz L_FIN")
    a("buffer_store_dwordx2 v[8:9], v2, s[36:39], 0 offen")
    a.label("L_FIN")
    if opt.get("probe") == 11:
        a("s_memrealtime s[64:65]")
    if opt.get("probe") == 17:
        a("s_waitcnt vmcnt(0)")
        a("s_memrealtime s[64:65]")
    if opt.get("fixed"):
        a("s_waitcnt lgkmcnt(0)")
        if "fixedwg" in opt:
            a(f"s_cmp_eq_u32 s2, {opt['fixedwg']}")
            a("s_cbranch_scc0 L_END0")
        a("s_waitcnt vmcnt(0)")
        a.label("L_FIX")
        a("s_memrealtime s[66:67]")
        a("s_waitcnt lgkmcnt(0)")
        a("s_sub_u32 s66, s66, s64")
        a(f"s_cmp_lt_u32 s66, {opt['fixed']}")
        a("s_cbranch_scc1 L_FIX")
    if ST.on:
        a("s_mov_b64 exec, -1")
        ST.stamp(11)
        a("s_waitcnt vmcnt(0)")
        a("s_cmp_ge_u32 s40, 4")
        a("s_cbranch_scc0 L_ST2")
        ST.stamp(7)
        a.label("L_ST2")
        a("s_barrier")
        ST.dump(18, 40)
    a("s_endpgm")

    a.label("L_PUBSLOW")
    publish(" sc1")
    a("s_branch L_TAIL")
    a.label("L_TAILSLOW")
    poll("SLOW", " sc1", 8)

    loader_ctx[0] = True
    a.label("L_LOADLOOP")
    a("s_mov_b32 s4, s34")
    a("s_mov_b32 s5, s35")
    XB[0], XB[1] = 4, 5
    other_srds()
    a("s_lshl_b32 s58, s46, 10")
    a(f"s_add_u32 s58, s58, {FLAG_OFF}")
    for r in range(40, 44):
        a(f"v_mov_b32 v{r}, 0")
    a("v_lshlrev_b32 v49, 4, v2")
    a("s_cmp_eq_u32 s47, 0")
    a("s_cselect_b32 s55, 2, 1")
    a("s_cmp_eq_u32 s40, 4")
    a("s_cselect_b32 s55, s55, 0")
    a("s_cmp_eq_u32 s55, 2")
    a("s_cbranch_scc0 L_NORESET")
    a("buffer_store_dwordx4 v[40:43], v49, s[28:31], s58 offen sc1")
    a.label("L_NORESET")
    reset_pos = len(vq)
    gb_loads()
    srd(a, 32, 16, 17, 256)
    flag_addr()
    inbox_base()
    if opt.get("tlbw"):
        a("s_load_dword s63, s[18:19], s56")
        a("s_mul_i32 s48, s43, 496640")
        a("s_load_dword s61, s[14:15], s48")
    a("s_lshl_b32 s60, s46, 4")
    a("v_lshlrev_b32 v42, 7, v2")
    a("s_lshl_b32 s57, s45, 13")
    a("s_add_u32 s57, s57, s56")
    a("s_getreg_b32 s48, hwreg(HW_REG_XCC_ID, 0, 4)")
    a("s_or_b32 s48, s48, 0x10")
    a("v_mov_b32 v41, s48")
    a("s_lshl_b32 s59, s47, 2")
    a("s_add_u32 s59, s59, s58")
    a("v_and_b32 v50, 15, v2")
    a("v_lshlrev_b32 v50, 2, v50")

    def lwait(tags):
        idx = max(k for k, tg in enumerate(vq) if tg in tags)
        n = len(vq) - 1 - idx
        assert n <= 63
        a(f"s_waitcnt vmcnt({n})")

    def one_lane(ins):
        a("s_mov_b64 exec, 1")
        a(ins)
        a("s_mov_b64 exec, -1")

    nu = N0
    ST.stamp(2)
    lwait([("w", 0), "x0"])
    ST.stamp(3)
    a("s_barrier")
    ST.stamp(4)
    ST.cstamp(8)
    tl_wait = [bool(opt.get("tlbw"))]
    GAP = opt.get("gap", 4)
    N_RDY = opt.get("nrdy", 1)
    N_RL = opt.get("nrl", 4)
    N_XCC = N_RL + GAP
    N_CHK = opt.get("nchk", N_XCC + GAP)
    N_MODE = N_CHK + GAP
    N_TOUCH = opt.get("ntouch", N_MODE + 1)
    TSTEP = opt.get("tstep", 2)
    xq = list(range(9))
    X1 = opt.get("x1", 1)
    pos = {}
    for n in range(30):
        umax = min(NS - 1, 2 * n - 1 + RING_UNITS, 2 * n + 1 + LA)
        k = 0
        while nu <= umax and k < PER:
            w_unit(nu); nu += 1; k += 1
        assert nu >= min(NS, 2 * (n + 2)), (n, nu)
        if n >= X1:
            for _ in range(opt.get("xper", 2)):
                if xq:
                    x_piece(1, xq.pop(0)); vq.append("x1")
        if n == N_RDY:
            a("s_cmp_eq_u32 s55, 2")
            a("s_cbranch_scc0 L_NORDY")
            a(f"s_waitcnt vmcnt({len(vq) - reset_pos})")
            one_lane("buffer_store_dword v41, v40, s[32:35], s60 offen sc1")
            a.label("L_NORDY")
        if n == N_RL:
            a("s_cmp_eq_u32 s55, 0")
            a("s_cbranch_scc1 L_NORL")
            one_lane("buffer_load_dword v44, v40, s[32:35], s60 offen sc1")
            a.label("L_NORL")
            pos["rl"] = len(vq)
        if n == N_XCC:
            a("s_waitcnt lgkmcnt(0)")
            a("s_cmp_eq_u32 s55, 0")
            a("s_cbranch_scc1 L_NOXCC")
            if opt.get("hs"): ST.stamp(12)
            a(f"s_waitcnt vmcnt({len(vq) - pos['rl']})")
            a(f"s_mov_b32 s63, {SPIN_LIMIT}")
            a.label("L_RCHK")
            a("v_readfirstlane_b32 s48, v44")
            a("s_cmp_lg_u32 s48, 0")
            a("s_cbranch_scc1 L_ROK")
            a("s_sub_u32 s63, s63, 1")
            a("s_cmp_eq_u32 s63, 0")
            a("s_cbranch_scc1 L_ROK")
            a("s_sleep 4")
            one_lane("buffer_load_dword v44, v40, s[32:35], s60 offen sc1")
            a("s_waitcnt vmcnt(0)")
            a("s_branch L_RCHK")
            a.label("L_ROK")
            if opt.get("hs"): ST.stamp(13)
            one_lane("buffer_store_dword v41, v40, s[28:31], s59 offen offset:64 sc1")
            a.label("L_NOXCC")
        if n == N_CHK:
            a("s_cmp_eq_u32 s55, 0")
            a("s_cbranch_scc1 L_NOCHK")
            a("buffer_load_dword v44, v50, s[28:31], s58 offen offset:64 sc1")
            a.label("L_NOCHK")
            pos["chk"] = len(vq)
        if n == N_MODE:
            a("s_cmp_eq_u32 s55, 0")
            a("s_cbranch_scc1 L_NOMODE")
            if opt.get("hs"): ST.stamp(1)
            a(f"s_waitcnt vmcnt({len(vq) - pos['chk']})")
            if opt.get("hs"): ST.stamp(3)
            a(f"s_mov_b32 s63, {SPIN_LIMIT}")
            a.label("L_HCHK")
            a("v_cmp_eq_u32 vcc, 0, v44")
            a("s_cmp_eq_u64 vcc, 0")
            a("s_cbranch_scc1 L_HOK")
            a("s_sub_u32 s63, s63, 1")
            a("s_cmp_eq_u32 s63, 0")
            a("s_cbranch_scc1 L_HOK")
            a("s_sleep 4")
            a("buffer_load_dword v44, v50, s[28:31], s58 offen offset:64 sc1")
            a("s_waitcnt vmcnt(0)")
            a("s_branch L_HCHK")
            a.label("L_HOK")
            if opt.get("hs"): ST.stamp(2)
            a("v_cmp_ne_u32 vcc, v41, v44")
            a("s_cmp_eq_u64 vcc, 0")
            a("s_cselect_b32 s61, 1, 0")
            if opt.get("forceslow"):
                a("s_mov_b32 s61, 0")
            a("v_mov_b32 v10, s61")
            a(f"v_mov_b32 v11, {MODE_LDS}")
            a("ds_write_b32 v11, v10")
            a("s_waitcnt lgkmcnt(0)")
            a.label("L_NOMODE")
        if n == N_MODE + 1:
            a(f"v_mov_b32 v11, {MODE_LDS}")
            a("ds_read_b32 v10, v11")
            a("s_waitcnt lgkmcnt(0)")
            a("v_readfirstlane_b32 s61, v10")
            a("s_lshl_b32 s49, s61, 2")
            a("s_add_u32 s55, s49, s45")
        if opt.get("touch", 1):
            for w in range(4):
                if n == N_TOUCH + TSTEP * w:
                    a(f"s_cmp_eq_u32 s55, {4 + w}")
                    a(f"s_cbranch_scc0 L_NOTOUCH{w}")
                    if opt.get("ts"):
                        a("s_waitcnt vmcnt(0)")
                        ST.stamp(12)
                    one_lane("buffer_load_dword v43, v40, s[28:31], s62 offen")
                    if opt.get("ts"):
                        a("s_waitcnt vmcnt(0)")
                        ST.stamp(13)
                    a("buffer_load_dword v48, v42, s[28:31], s57 offen")
                    if opt.get("ts"):
                        ST.stamp(1)
                        a("s_waitcnt vmcnt(0)")
                        ST.stamp(2)
                    a.label(f"L_NOTOUCH{w}")
        need = [("w", n + 1)]
        if n + 1 == plane_avail[1]:
            assert not xq
            need.append("x1")
        lwait(need)
        a("s_barrier")
    assert nu == NS
    assert N_MODE < B_MODE and N_TOUCH > N_MODE and N_TOUCH + 3 * TSTEP < 30
    ST.stamp(5)
    ST.cstamp(9)
    if ST.on:
        a("s_getreg_b32 s76, hwreg(HW_REG_XCC_ID)")
        a("s_add_u32 s76, s76, 1000")
    a("s_branch L_TAIL")
    a.label("L_CODE_END")
    return NV


def main():
    opt = {}
    for arg in sys.argv[2:]:
        k, v = arg.split("=")
        opt[k] = int(v)
    a = Asm()
    nv = gen(a, opt)
    out = HEADER
    out += f"; @launch grid=(256,1,1) block=(512,1,1) lds={LDS_BYTES}\n"
    out += '.amdgcn_target "amdgcn-amd-amdhsa--gfx950"\n.text\n'
    out += a.text()
    out += '.section .rodata,"a"\n'
    out += kd(KNAME, nv, 102 if (opt.get("stamps") or opt.get("fixed")) else 64)
    open(sys.argv[1], "w").write(out)


if __name__ == "__main__":
    main()
```

```python
import sys, struct
from gen2 import Asm, vr, srd, Stamps, kd, HEADER, KNAME, f2u

PASSES = [(0, 0), (1, 0), (0, 1), (1, 1)]
J = 16
W_BYTES = 31 * 512 * 512 * 2
OUT_BYTES = 2 * 485 * 512 * 2
EX_BYTES = 256 * 32768
FLAG_OFF = EX_BYTES
WS_BYTES = EX_BYTES + 16 * 1024
PLANE = 34 * 1024
XLDS = 2 * PLANE
RING_UNITS = 22
HALF = 11
RING_BASE = XLDS
MODE_LDS = XLDS + RING_UNITS * 4096
TL = MODE_LDS + 256
LDS_BYTES = MODE_LDS + 512
SPIN_LIMIT = 40000


def steps_list():
    st = []
    for cb, p in PASSES:
        for i in range(16 - p):
            st.append((cb, p, i, 2 * i + p))
    return st


def gen(a, opt):
    RX = 32
    loader_ctx = [False]
    ST = Stamps(a, opt.get("stamps", 0))
    if "probe" in opt:
        class P:
            on = False
            def init(self): pass
            def cstamp(self, i): pass
            def dump(self, *x): pass
            def stamp(self, i):
                if i == opt["probe"] and not loader_ctx[0]:
                    a("s_memrealtime s[64:65]")
        ST = P()
        opt["fixed"] = 3000
    V_ACC = 16
    V_W = 80
    V_X = 88
    V_XA = V_X + 4 * RX
    V_WA = V_XA + 8
    NV = V_WA + 2
    st = steps_list()
    NS = len(st)
    N0 = opt.get("n0", 8)
    LA = opt.get("la", 20)
    HS = opt.get("hs", 4)
    FS = opt.get("fs", 1)
    CBSW = opt.get("cbswap", 0)

    a.raw(f".globl {KNAME}")
    a.raw(".p2align 8")
    a.raw(f".type {KNAME},@function")
    a.label(KNAME)
    a("s_cmp_ge_u32 s2, 256")
    a("s_cbranch_scc1 L_END0")
    ST.init()
    ST.stamp(0)
    if opt.get("fixed"):
        a("s_memrealtime s[64:65]")
    a("s_load_dwordx8 s[4:11], s[0:1], 0")
    a("s_load_dwordx8 s[12:19], s[0:1], 32")
    a("v_lshrrev_b32 v16, 6, v0")
    a("v_and_b32 v17, 63, v0")
    MAP = opt.get("map", 1)
    if MAP == 1:
        a("s_and_b32 s42, s2, 3")
        a("v_readfirstlane_b32 s40, v16")
        a("s_lshl_b32 s42, s42, 1")
        a("s_lshr_b32 s48, s2, 7")
        a("s_add_u32 s42, s42, s48")
        a("s_bfe_u32 s47, s2, 0x40003")
        a("s_bfe_u32 s43, s2, 0x10002")
        a("s_and_b32 s41, s47, 7")
        a("s_lshr_b32 s44, s47, 3")
    elif MAP == 0:
        a("s_and_b32 s42, s2, 7")
        a("v_readfirstlane_b32 s40, v16")
        a("s_bfe_u32 s47, s2, 0x40003")
        a("s_lshr_b32 s43, s2, 7")
        a("s_and_b32 s41, s47, 7")
        a("s_lshr_b32 s44, s47, 3")
    else:
        a("s_and_b32 s47, s2, 15")
        a("v_readfirstlane_b32 s40, v16")
        a("s_bfe_u32 s42, s2, 0x30004")
        a("s_lshr_b32 s43, s2, 7")
        a("s_and_b32 s41, s47, 7")
        a("s_lshr_b32 s44, s47, 3")
    a("s_and_b32 s45, s40, 3")
    a("s_lshl_b32 s46, s43, 3")
    a("s_add_u32 s46, s46, s42")
    a("s_mul_i32 s52, s43, 1024000")
    a("s_lshl_b32 s48, s44, 19")
    a("s_add_u32 s52, s52, s48")
    a("s_lshl_b32 s48, s41, 7")
    a("s_add_u32 s52, s52, s48")
    a("s_lshl_b32 s48, s45, 15")
    a("s_add_u32 s60, s52, s48")
    a("s_lshl_b32 s61, s45, 11")
    a("s_and_b32 s48, s42, %d" % (1 if opt.get("xswap", 1) else 0))
    a("s_lshl_b32 s49, s48, 18")
    a("s_add_u32 s50, s60, s49")
    a("s_xor_b32 s49, s49, 0x40000")
    a("s_add_u32 s60, s60, s49")
    a("s_lshl_b32 s49, s48, 14")
    a("s_add_u32 s51, s61, s49")
    a("s_xor_b32 s49, s49, 0x4000")
    a("s_add_u32 s61, s61, s49")
    a("v_lshrrev_b32 v18, 4, v17")
    a("v_lshlrev_b32 v18, 12, v18")
    a("v_bfe_u32 v19, v17, 3, 1")
    a("v_lshl_add_u32 v18, v19, 11, v18")
    a("v_and_b32 v19, 7, v17")
    a("v_lshl_add_u32 v22, v19, 4, v18")
    a("s_lshl_b32 s48, s45, 5")
    a("v_xor_b32 v20, s48, v22")
    a("v_xor_b32 v21, 0x800, v20")
    a("s_add_u32 s48, s43, 1")
    a("s_mul_i32 s22, s48, 1024000")
    a("s_mov_b32 s23, 0x20000")
    a("s_cmp_ge_u32 s40, 4")
    a("s_cbranch_scc0 L_COMPUTE")

    XB = {"B": (60, 61)}

    def x_piece(p, i, e):
        if i < 4:
            ss, sl = (50, 51) if i < 2 else XB["B"]
            a(f"s_add_u32 m0, s{sl}, {p*PLANE + (i & 1)*8192 + e*1024}")
            a(f"s_add_u32 s48, s{ss}, {p*1024 + (i & 1)*131072 + e*16384}")
            a(f"buffer_load_dwordx4 v{20 + (i & 1)}, s[20:23], s48 offen lds")
        else:
            a(f"s_add_u32 m0, s53, {p*PLANE}")
            a(f"s_add_u32 s48, s52, {p*1024}")
            a("buffer_load_dwordx4 v22, s[20:23], s48 offen lds")

    def gb_loads():
        a("s_lshl_b32 s48, s42, 7")
        a("s_lshl_b32 s49, s47, 3")
        a("s_add_u32 s48, s48, s49")
        a("s_load_dwordx2 s[8:9], s[8:9], s48")
        a("s_load_dwordx2 s[10:11], s[10:11], s48")
        a("s_load_dwordx2 s[12:13], s[12:13], s48")

    def other_srds():
        srd(a, 28, 18, 19, WS_BYTES)
        srd(a, 36, 14, 15, OUT_BYTES)

    def flag_addr():
        a("s_lshl_b32 s62, s46, 10")
        a("s_lshl_b32 s48, s45, 8")
        a("s_add_u32 s62, s62, s48")
        a("s_lshl_b32 s48, s44, 7")
        a("s_add_u32 s62, s62, s48")
        a("s_lshl_b32 s48, s41, 2")
        a("s_add_u32 s62, s62, s48")
        a(f"s_add_u32 s62, s62, {FLAG_OFF}")

    def inbox_base():
        a("s_lshl_b32 s56, s46, 4")
        a("s_add_u32 s56, s56, s47")
        a("s_lshl_b32 s56, s56, 15")

    c1 = -2.0 * 1.4426950408889634 * 0.7978845608028654
    c2 = c1 * 0.044715

    def tail_setup():
        inbox_base()
        a("s_add_u32 s57, s56, 4096")
        a("s_add_u32 s58, s56, 8192")
        a("s_add_u32 s59, s56, 12288")
        a("s_lshl_b32 s60, s46, 10")
        a("s_lshr_b32 s49, s47, 2")
        a("s_lshl_b32 s49, s49, 8")
        a("s_add_u32 s60, s60, s49")
        a("s_lshr_b32 s49, s40, 2")
        a("s_lshl_b32 s49, s49, 7")
        a("s_add_u32 s60, s60, s49")
        a(f"s_add_u32 s60, s60, {FLAG_OFF}")
        a("v_and_b32 v3, 7, v0")
        a("v_lshlrev_b32 v24, 5, v3")
        a("v_lshlrev_b32 v3, 2, v3")
        a("v_bfe_u32 v15, v0, 5, 1")
        a("v_and_b32 v1, 31, v0")
        a("v_lshlrev_b32 v1, 4, v1")
        a("v_lshl_add_u32 v1, v15, 14, v1")
        a("s_lshl_b32 s49, s40, 9")
        a("v_add_u32 v1, s49, v1")
        a("v_and_b32 v2, 15, v0")
        a("v_lshl_add_u32 v2, v2, 4, v15")
        a("v_bfe_u32 v15, v0, 4, 1")
        a("v_lshl_add_u32 v2, v15, 1, v2")
        a("s_lshr_b32 s49, s40, 2")
        a("s_lshl_b32 s49, s49, 8")
        a("s_lshl_b32 s48, s45, 2")
        a("s_add_u32 s49, s49, s48")
        a("v_add_u32 v2, s49, v2")
        a("s_movk_i32 s49, 485")
        a("v_cmp_gt_u32 s[24:25], s49, v2")
        a("s_mul_i32 s49, s43, 485")
        a("v_add_u32 v2, s49, v2")
        a("v_lshlrev_b32 v2, 10, v2")
        a("s_lshl_b32 s48, s42, 7")
        a("s_lshl_b32 s49, s47, 3")
        a("s_add_u32 s48, s48, s49")
        a("v_add_u32 v2, s48, v2")
        a("v_lshrrev_b32 v4, 3, v0")
        a("v_lshlrev_b32 v4, 2, v4")
        a(f"v_add_u32 v4, {TL}, v4")
        a("v_bfe_u32 v15, v0, 3, 3")
        a("v_lshl_add_u32 v5, v15, 2, v24")
        a(f"v_add_u32 v5, {TL}, v5")
        a(f"v_mov_b32 v12, {f2u(c1):#x}")
        a(f"v_mov_b32 v13, {f2u(c1):#x}")
        a(f"s_mov_b32 s20, {f2u(c2):#x}")
        a(f"s_mov_b32 s21, {f2u(c2):#x}")
        a("s_mov_b32 s22, 1.0")
        a("s_mov_b32 s23, 1.0")
        a(f"s_mov_b32 s26, {f2u(1.0/485.0):#x}")
        a("s_mov_b32 s27, 0xffff0000")
        a(f"s_mov_b32 s63, {SPIN_LIMIT}")
        a("s_waitcnt lgkmcnt(0)")
        a("s_lshl_b32 s4, s8, 16")
        a("s_and_b32 s5, s8, 0xffff0000")
        a("s_lshl_b32 s6, s9, 16")
        a("s_and_b32 s7, s9, 0xffff0000")
        a("s_mov_b32 vcc_lo, 0")
        a("s_mov_b32 vcc_hi, -1")
        a("v_mov_b32 v11, s10")
        a("v_mov_b32 v24, s11")
        a("v_mov_b32 v14, s12")
        a("v_mov_b32 v25, s13")
        a("v_cndmask_b32 v11, v11, v24, vcc")
        a("v_cndmask_b32 v14, v14, v25, vcc")
        a("s_mov_b32 vcc_lo, 0xffff0000")
        a("s_mov_b32 vcc_hi, 0xffff0000")
        a("v_lshlrev_b32 v24, 16, v11")
        a("v_lshlrev_b32 v25, 16, v14")
        a("v_and_b32 v11, 0xffff0000, v11")
        a("v_and_b32 v14, 0xffff0000, v14")
        a("v_cndmask_b32 v11, v24, v11, vcc")
        a("v_cndmask_b32 v14, v25, v14, vcc")

    loader_ctx[0] = True
    if opt.get("cpf", 1):
        a("s_getpc_b64 s[56:57]")
        a.label("L_PC")
        a("s_lshr_b32 s48, s2, 3")
        a("s_lshl_b32 s48, s48, 2")
        a("s_add_u32 s48, s48, s45")
        a("s_lshl_b32 s48, s48, 8")
        a("v_lshl_add_u32 v30, v17, 7, s48")
        a("v_min_u32 v30, L_CODE_END-L_PC-4, v30")
        a("s_mov_b64 exec, 3")
        a("global_load_dword v31, v30, s[56:57]")
        a("s_mov_b64 exec, -1")
    a("s_and_b32 s48, s45, 1")
    a("s_add_u32 s48, s48, 32")
    a("s_lshl_b32 s53, s48, 10")
    a("s_lshl_b32 s48, s48, 14")
    a("s_add_u32 s52, s52, s48")
    a("v_lshrrev_b32 v26, 3, v17")
    a("s_lshl_b32 s48, s45, 3")
    a("v_add_u32 v26, s48, v26")
    a("v_lshlrev_b32 v26, 10, v26")
    a("v_bfe_u32 v27, v17, 4, 1")
    a("s_and_b32 s48, s45, 1")
    a("s_lshl_b32 s48, s48, 1")
    a("v_or_b32 v27, s48, v27")
    a("v_lshlrev_b32 v27, 1, v27")
    a("v_xor_b32 v27, v27, v19")
    a("v_lshl_add_u32 v26, v27, 4, v26")
    a("s_lshl_b32 s48, s42, 7")
    a("s_lshl_b32 s49, s41, 16")
    a("s_add_u32 s48, s48, s49")
    if CBSW:
        a(f"s_lshl_b32 s49, s{44 if CBSW == 1 else 43}, 15")
        a("s_add_u32 s48, s48, s49")
    a("v_add_u32 v26, s48, v26")
    a("v_xor_b32 v27, 0x8000, v26")
    a("s_lshl_b32 s54, s45, 10")
    a(f"s_add_u32 s54, s54, {RING_BASE}")
    a("s_mov_b32 s26, %d" % W_BYTES)
    a("s_mov_b32 s27, 0x20000")
    a("s_waitcnt lgkmcnt(0)")
    ST.stamp(1)
    a("s_mov_b32 s24, s6")
    a("s_and_b32 s25, s7, 0xffff")
    a("s_mov_b32 s20, s4")
    a("s_and_b32 s21, s5, 0xffff")
    vq = []

    def w_unit(u):
        cb, p, i, tap = st[u]
        a(f"s_add_u32 m0, s54, {(u % RING_UNITS) * 4096}")
        a(f"s_mov_b32 s48, {tap * 524288}")
        a(f"buffer_load_dwordx4 v{26 + cb}, s[24:27], s48 offen lds")
        vq.append(("w", u))

    NW0 = max(2, HS)
    for u in range(NW0):
        w_unit(u)
    if HS:
        lx0 = [(i, 0) for i in range(4)] + [(4, 0)]
        cx0 = [(i, 1) for i in range(4)]
    else:
        lx0 = [(2, 0), (2, 1), (3, 0), (3, 1), (4, 0)]
        cx0 = [(0, 0), (0, 1), (1, 0), (1, 1)]
    for i, e in lx0:
        x_piece(0, i, e); vq.append("x0")
    for u in range(NW0, N0):
        w_unit(u)
    a("s_branch L_LOADLOOP")
    a.label("L_END0")
    a("s_endpgm")

    loader_ctx[0] = False
    a.label("L_COMPUTE")
    a("v_and_b32 v23, 15, v17")
    a("v_lshrrev_b32 v16, 4, v17")
    for d in range(2):
        a(f"v_add_u32 v18, {d}, v23")
        a("v_and_b32 v18, 7, v18")
        a("v_lshlrev_b32 v18, 1, v18")
        a("v_xor_b32 v18, v16, v18")
        a("v_lshlrev_b32 v18, 4, v18")
        a(f"v_lshl_add_u32 v{V_XA + 4*d}, v23, 11, v18")
        if CBSW:
            a(f"s_lshl_b32 s48, s{44 if CBSW == 1 else 43}, 6")
            a(f"v_xor_b32 v{V_XA + 4*d}, s48, v{V_XA + 4*d}")
    a("s_waitcnt lgkmcnt(0)")
    ST.stamp(1)
    a("s_mov_b32 s20, s4")
    a("s_and_b32 s21, s5, 0xffff")
    for i, e in cx0:
        x_piece(0, i, e)
    gb_loads()
    other_srds()
    for d in range(2):
        for z in range(1, 4):
            a(f"v_xor_b32 v{V_XA + 4*d + z}, {z << 6}, v{V_XA + 4*d}")
    a("v_lshrrev_b32 v18, 2, v23")
    a("v_lshl_add_u32 v18, v16, 3, v18")
    a("v_lshlrev_b32 v18, 7, v18")
    a("v_lshrrev_b32 v19, 3, v23")
    a("v_and_b32 v26, 1, v16")
    a("v_lshl_or_b32 v19, v26, 1, v19")
    a("v_xor_b32 v19, s40, v19")
    a("v_lshl_add_u32 v18, v19, 5, v18")
    a("v_and_b32 v19, 3, v23")
    a("v_lshl_add_u32 v18, v19, 3, v18")
    a(f"v_add_u32 v{V_WA}, {RING_BASE}, v18")
    a(f"v_add_u32 v{V_WA+1}, {RING_BASE + HALF*4096}, v18")
    a("s_lshl_b32 s48, s40, 2")
    a("v_add_u32 v6, s48, v16")
    a("v_lshlrev_b32 v6, 15, v6")
    a("v_lshl_add_u32 v6, v23, 4, v6")
    a("s_lshl_b32 s55, s46, 19")
    a("s_lshl_b32 s48, s41, 12")
    a("s_add_u32 s55, s55, s48")
    a("s_lshl_b32 s48, s44, 11")
    a("s_add_u32 s55, s55, s48")
    flag_addr()
    a("v_mov_b32 v8, 1")
    a("v_mov_b32 v9, 0")
    a(f"v_mov_b32 v7, {MODE_LDS}")
    tail_setup()
    a("s_waitcnt vmcnt(0)")
    ST.stamp(2)
    a("s_barrier")
    ST.stamp(3)

    frags = []
    pass_off = {}
    for cb, p in PASSES:
        pass_off[(cb, p)] = len(frags)
        for f in range(16 - p + J - 1):
            frags.append((cb, p, f))
    AV1 = opt.get("av1", 11)
    B_MODE = opt.get("bmode", 24)

    def x_avail(F):
        cb, p, f = frags[F]
        if p == 1:
            return AV1
        if HS and not (F < 31 and 8 <= f <= 15):
            return 1
        return 0

    def w_avail(u):
        return 0 if u < NW0 else u // 2

    blocks = []
    for i in range(HS):
        blocks.append((i, [j for j in range(J) if 8 <= i + j <= 15]))
    for i in range(HS):
        blocks.append((i, [j for j in range(J) if not 8 <= i + j <= 15]))
    last_full = NS - 2 if FS else NS
    for t in range(HS, last_full):
        blocks.append((t, list(range(J))))
    bar_at = set()
    if HS:
        assert HS == 4
        bar_at.add(opt.get("hsbar", 2))
        bar_at.add(2 * HS - 1)
    for bi, (t, js) in enumerate(blocks):
        if bi >= 2 * HS and t % 2 == 1 and t + 1 < NS:
            bar_at.add(bi)
    xorder = list(range(len(frags)))
    if HS:
        xorder = list(range(8, 16)) + [7, 6, 5, 4, 3, 2, 1, 0][::-1] + list(range(16, len(frags)))

    S = dict(lds_q=[], waited=-1, bars=0, nx=0, init=set())
    NB = len(blocks)
    V_WLAST = V_X + 4 * ((len(frags) + 3) % RX)

    def wreg(key):
        return V_WLAST if key == NB + 1 else V_W + 4 * (key % 2)

    def issue_x(F):
        cb, p, f = frags[F]
        d = f >> 4
        z = (f & 1) * 2 + cb
        r = V_X + 4 * (F % RX)
        assert S["bars"] >= x_avail(F)
        a(f"ds_read_b128 {vr(r,4)}, v{V_XA + 4*d + z} offset:{p*PLANE + (f>>1)*256}")
        S["lds_q"].append(("x", F))

    def issue_w(key, u, h):
        uu = u % RING_UNITS
        off = (uu % HALF) * 4096 + h * 512
        r = wreg(key) + 2 * h
        assert S["bars"] >= w_avail(u), (u, S["bars"])
        a(f"ds_read_b64_tr_b16 {vr(r,2)}, v{V_WA + uu // HALF} offset:{off}")
        S["lds_q"].append(("w", key, h))

    def wait_for(tags):
        q = S["lds_q"]
        idx = max(q.index(tg) for tg in tags)
        if idx <= S["waited"]:
            return
        n = len(q) - 1 - idx
        if n > 15:
            n = 15
            idx = len(q) - 1 - n
        a(f"s_waitcnt lgkmcnt({n})")
        S["waited"] = idx

    def mfma(j, key, F):
        acc = V_ACC + 4 * j
        c = vr(acc, 4) if j in S["init"] else "0"
        S["init"].add(j)
        a(f"v_mfma_f32_16x16x32_bf16 {vr(acc,4)}, {vr(wreg(key),4)}, {vr(V_X + 4*(F % RX),4)}, {c}")

    issue_w(0, 0, 0); issue_w(0, 0, 1)
    for k in range(8 if HS else 12):
        issue_x(xorder[k]); S["nx"] += 1

    XPS = opt.get("xps", 3)
    NB = len(blocks)
    nxt_unit = [blocks[bi + 1][0] if bi + 1 < NB else (NS - 2 if FS else None) for bi in range(NB)]
    mode_blk = next(bi for bi, (t, js) in enumerate(blocks) if bi >= 2 * HS and t == 2 * B_MODE + 1)
    for bi, (t, js) in enumerate(blocks):
        cb, p, i, tap = st[t]
        off = pass_off[(cb, p)]
        fmin = off + (i if bi >= HS else 0)
        if bi >= 2 * HS and t % 8 == 4 and t < 48:
            ST.stamp(4 + t // 8)
        side = []
        nb = S["bars"]
        if bi in bar_at:
            side.append(("bar",)); nb += 1
        ws = [("w", bi + 1, nxt_unit[bi], 0), ("w", bi + 1, nxt_unit[bi], 1)] if nxt_unit[bi] is not None else []
        if FS and bi == NB - 1:
            ws += [("w", NB + 1, NS - 1, 0), ("w", NB + 1, NS - 1, 1)]
        xs = []
        tmp = S["nx"]
        lim = len(js) - len(side) - len(ws) - 1 if bi < max(2 * HS, 1) else XPS
        while len(xs) < lim and tmp < len(frags) and xorder[tmp] - fmin < RX and nb >= x_avail(xorder[tmp]):
            xs.append(("x", xorder[tmp])); tmp += 1
        side += (xs[:4] + ws + xs[4:]) if (bi == 0 and not HS) else (ws + xs)
        if bi == mode_blk:
            assert S["bars"] >= B_MODE
            side.append(("mode",))
        if bi == mode_blk + 2:
            wait_for([("mode",)])
            side.append(("raw", "v_readfirstlane_b32 s61, v10"))
        fine = bi < max(2 * HS + 1, 1)
        for k, j in enumerate(js):
            F = off + i + j
            if fine:
                wait_for([("w", bi, 0), ("w", bi, 1), ("x", F)])
            elif k == 0:
                wait_for([("w", bi, 0), ("w", bi, 1)] + [("x", off + i + jj) for jj in js[:len(js) // 2]])
            elif k == len(js) // 2:
                wait_for([("x", off + i + jj) for jj in js])
            mfma(j, bi, F)
            if side:
                s = side.pop(0)
                if s[0] == "bar":
                    a("s_barrier"); S["bars"] += 1
                elif s[0] == "w":
                    issue_w(s[1], s[2], s[3])
                elif s[0] == "x":
                    issue_x(s[1]); S["nx"] += 1
                elif s[0] == "mode":
                    a("ds_read_b32 v10, v7")
                    S["lds_q"].append(("mode",))
                else:
                    a(s[1])
        assert not side, (bi, side)
    assert S["nx"] == len(frags)
    assert S["bars"] == 30, S["bars"]

    cb, p, i, tap = st[NS - 2]
    off = pass_off[(cb, p)]
    live = {(off + i + k) % RX for k in range(J + 1)}
    live.add((off + i - 1) % RX)
    assert (V_WLAST - V_X) // 4 not in live
    live.add((V_WLAST - V_X) // 4)
    dead = [s_ for s_ in range(RX) if s_ not in live]
    assert len(dead) >= 8

    def pub_ops(jp, fl):
        P = V_X + 4 * dead[jp]
        A = V_ACC + 8 * jp
        return [f"v_cvt_pk_bf16_f32 v{P}, v{A}, v{A+1}",
                f"v_cvt_pk_bf16_f32 v{P+1}, v{A+2}, v{A+3}",
                f"v_cvt_pk_bf16_f32 v{P+2}, v{A+4}, v{A+5}",
                f"v_cvt_pk_bf16_f32 v{P+3}, v{A+6}, v{A+7}",
                f"buffer_store_dwordx4 {vr(P, 4)}, v6, s[28:31], s55 offen offset:{jp*256}{fl}"]

    def finish(fl):
        if not FS:
            ST.stamp(12)
            for jp in range(8):
                for ln in pub_ops(jp, fl):
                    a(ln)
            return
        saved = (list(S["lds_q"]), S["waited"])
        k0, k1 = NB, NB + 1
        wait_for([("w", k0, 0), ("w", k0, 1), ("w", k1, 0), ("w", k1, 1)] + [("x", off + i + k) for k in range(J + 1)])
        pend = []
        cnt = 0
        seq = []
        for G in range(4):
            for (key, di) in ((k0, 0), (k1, 1)):
                for j in range(4 * G, 4 * G + 4):
                    seq.append((G, key, di, j))
        for n_, (G, key, di, j) in enumerate(seq):
            mfma(j, key, off + i + di + j); cnt += 1
            if n_ == 0:
                pass
            if key == k1 and j % 2 == 1:
                for ln in pub_ops(j // 2, fl):
                    pend.append((cnt + 9, ln))
            e = 0
            while pend and pend[0][0] <= cnt and e < 2:
                a(pend.pop(0)[1]); cnt += 1; e += 1
        ST.stamp(12)
        while pend:
            if pend[0][0] > cnt:
                a(f"s_nop {pend[0][0] - cnt - 1}"); cnt = pend[0][0]
            a(pend.pop(0)[1]); cnt += 1
        S["lds_q"], S["waited"] = saved

    a("s_cmp_eq_u32 s61, 1")
    a("s_cbranch_scc0 L_PUBSLOW")
    finish("")
    ST.stamp(13)
    D = 128 if not FS else V_ACC + 32
    D = 48

    def poll(tag, fflag, sleep):
        a("s_barrier")
        a("s_waitcnt vmcnt(0)")
        a(f"buffer_store_dword v8, v9, s[28:31], s62 offen{fflag}")
        ST.stamp(14)
        a.label(f"L_POLL{tag}")
        a("buffer_load_dword v15, v3, s[28:31], s60 offen sc1")
        a("s_sub_u32 s63, s63, 1")
        a("s_waitcnt vmcnt(0)")
        a("v_cmp_ne_u32 vcc, 1, v15")
        a("s_cmp_eq_u64 vcc, 0")
        a("s_cbranch_scc1 L_GOT")
        a("s_cmp_eq_u32 s63, 0")
        a("s_cbranch_scc1 L_GOT")
        if sleep:
            a(f"s_sleep {sleep}")
        a(f"s_branch L_POLL{tag}")

    poll("FAST", "", opt.get("psleep", 0))
    a.label("L_GOT")
    ST.stamp(15)
    for q in range(4):
        a(f"buffer_load_dwordx4 {vr(D+4*q,4)}, v1, s[28:31], s{56+q} offen sc1")
    for q in range(4):
        a(f"s_waitcnt vmcnt({3-q})")
        if q == 3:
            ST.stamp(10)
        T = 16 if q == 0 else 24
        for k in range(4):
            a(f"v_lshlrev_b32 v{T+2*k}, 16, v{D+4*q+k}")
            a(f"v_and_b32 v{T+2*k+1}, s27, v{D+4*q+k}")
        if q:
            for k in range(4):
                a(f"v_pk_add_f32 v[{16+2*k}:{17+2*k}], v[{16+2*k}:{17+2*k}], v[{24+2*k}:{25+2*k}]")
    a("s_nop 1")
    for r in range(4):
        a(f"v_permlane32_swap_b32 v{16+r}, v{20+r}")
    a("v_pk_add_f32 v[16:17], v[16:17], v[20:21]")
    a("v_pk_add_f32 v[18:19], v[18:19], v[22:23]")
    a("v_pk_add_f32 v[16:17], v[16:17], s[4:5]")
    a("v_pk_add_f32 v[18:19], v[18:19], s[6:7]")
    for r in range(4):
        a(f"v_cndmask_b32 v{20+r}, 0, v{16+r}, s[24:25]")
    a("v_pk_mul_f32 v[24:25], v[20:21], v[20:21]")
    a("v_pk_mul_f32 v[26:27], v[22:23], v[22:23]")
    a("v_permlane32_swap_b32 v20, v22")
    a("v_permlane32_swap_b32 v21, v23")
    a("v_permlane32_swap_b32 v24, v26")
    a("v_permlane32_swap_b32 v25, v27")
    a("v_add_f32 v20, v20, v22")
    a("v_add_f32 v21, v21, v23")
    a("v_add_f32 v24, v24, v26")
    a("v_add_f32 v25, v25, v27")
    a("s_nop 0")
    a("v_permlane16_swap_b32 v20, v21")
    a("v_permlane16_swap_b32 v24, v25")
    a("v_add_f32 v20, v20, v21")
    a("v_add_f32 v24, v24, v25")
    a("s_nop 0")
    a("v_add_f32_dpp v28, v20, v20 row_ror:8 row_mask:0xf bank_mask:0x3")
    a("v_add_f32_dpp v28, v24, v24 row_ror:8 row_mask:0xf bank_mask:0xc")

    def red8(r):
        for mod in ("row_half_mirror", "quad_perm:[1,0,3,2]", "quad_perm:[2,3,0,1]"):
            a("s_nop 1")
            a(f"v_add_f32_dpp v{r}, v{r}, v{r} {mod} row_mask:0xf bank_mask:0xf")

    red8(28)
    a("ds_write_b32 v4, v28")
    a("s_waitcnt lgkmcnt(0)")
    a("s_barrier")
    a("ds_read_b32 v28, v5")
    a("s_waitcnt lgkmcnt(0)")
    a("v_mul_f32 v28, s26, v28")
    red8(28)
    a("s_nop 1")
    a("v_mov_b32_dpp v29, v28 row_ror:8 row_mask:0xf bank_mask:0xf")
    a("v_fma_f32 v29, -v28, v28, v29")
    a("v_max_f32 v29, 0, v29")
    a(f"v_add_f32 v29, {f2u(1e-5):#x}, v29")
    a("v_rsq_f32 v29, v29")
    a("s_nop 0")
    a("v_mul_f32 v29, v11, v29")
    a("v_fma_f32 v28, -v28, v29, v14")
    for r in range(4):
        a(f"v_readlane_b32 s{48+r}, v29, {16*r}")
    for r in range(4):
        a(f"v_readlane_b32 s{52+r}, v28, {16*r}")
    a("v_pk_mul_f32 v[16:17], v[16:17], s[48:49]")
    a("v_pk_mul_f32 v[18:19], v[18:19], s[50:51]")
    a("v_pk_add_f32 v[16:17], v[16:17], s[52:53]")
    a("v_pk_add_f32 v[18:19], v[18:19], s[54:55]")
    a("v_pk_mul_f32 v[20:21], v[16:17], v[16:17]")
    a("v_pk_mul_f32 v[22:23], v[18:19], v[18:19]")
    a("v_pk_fma_f32 v[20:21], v[20:21], s[20:21], v[12:13]")
    a("v_pk_fma_f32 v[22:23], v[22:23], s[20:21], v[12:13]")
    a("v_pk_mul_f32 v[20:21], v[20:21], v[16:17]")
    a("v_pk_mul_f32 v[22:23], v[22:23], v[18:19]")
    for r in range(4):
        a(f"v_exp_f32 v{20+r}, v{20+r}")
    a("s_nop 0")
    a("v_pk_add_f32 v[20:21], v[20:21], s[22:23]")
    a("v_pk_add_f32 v[22:23], v[22:23], s[22:23]")
    for r in range(4):
        a(f"v_rcp_f32 v{20+r}, v{20+r}")
    a("s_nop 0")
    a("v_pk_mul_f32 v[16:17], v[16:17], v[20:21]")
    a("v_pk_mul_f32 v[18:19], v[18:19], v[22:23]")
    a("v_cvt_pk_bf16_f32 v20, v16, v17")
    a("v_cvt_pk_bf16_f32 v21, v18, v19")
    a("s_and_saveexec_b64 s[26:27], s[24:25]")
    a("s_cbranch_execz L_FIN")
    a("buffer_store_dwordx2 v[20:21], v2, s[36:39], 0 offen")
    a.label("L_FIN")
    if opt.get("probe") == 11:
        a("s_memrealtime s[64:65]")
    if opt.get("probe") == 17:
        a("s_waitcnt vmcnt(0)")
        a("s_memrealtime s[64:65]")
    if opt.get("fixed"):
        a("s_waitcnt vmcnt(0) lgkmcnt(0)")
        a.label("L_FIX")
        a("s_memrealtime s[66:67]")
        a("s_waitcnt lgkmcnt(0)")
        a("s_sub_u32 s66, s66, s64")
        a(f"s_cmp_lt_u32 s66, {opt['fixed']}")
        a("s_cbranch_scc1 L_FIX")
    if ST.on:
        a("s_mov_b64 exec, -1")
        ST.stamp(11)
        a("s_waitcnt vmcnt(0)")
        a("s_cmp_ge_u32 s40, 4")
        a("s_cbranch_scc0 L_ST2")
        ST.stamp(7)
        a.label("L_ST2")
        a("s_barrier")
        ST.dump(18, 40)
    a("s_endpgm")

    a.label("L_PUBSLOW")
    finish(" sc1")
    poll("SLOW", " sc1", 8)

    loader_ctx[0] = True
    a.label("L_LOADLOOP")
    a("s_mov_b32 s4, s60")
    a("s_mov_b32 s5, s61")
    XB["B"] = (4, 5)
    other_srds()
    a("s_lshl_b32 s58, s46, 10")
    a(f"s_add_u32 s58, s58, {FLAG_OFF}")
    for r in range(40, 44):
        a(f"v_mov_b32 v{r}, 0")
    a("v_lshlrev_b32 v49, 4, v17")
    a("s_cmp_eq_u32 s47, 0")
    a("s_cselect_b32 s55, 2, 1")
    a("s_cmp_eq_u32 s40, 4")
    a("s_cselect_b32 s55, s55, 0")
    a("s_cmp_eq_u32 s55, 2")
    a("s_cbranch_scc0 L_NORESET")
    a("buffer_store_dwordx4 v[40:43], v49, s[28:31], s58 offen sc1")
    a.label("L_NORESET")
    reset_pos = len(vq)
    gb_loads()
    srd(a, 32, 16, 17, 256)
    flag_addr()
    inbox_base()
    a("s_lshl_b32 s60, s46, 4")
    a("v_lshlrev_b32 v42, 7, v17")
    a("s_lshl_b32 s57, s45, 13")
    a("s_add_u32 s57, s57, s56")
    a("s_getreg_b32 s48, hwreg(HW_REG_XCC_ID, 0, 4)")
    a("s_or_b32 s48, s48, 0x10")
    a("v_mov_b32 v41, s48")
    a("s_lshl_b32 s59, s47, 2")
    a("s_add_u32 s59, s59, s58")
    a("v_and_b32 v50, 15, v17")
    a("v_lshlrev_b32 v50, 2, v50")

    def lwait(tags):
        idx = max(k for k, tg in enumerate(vq) if tg in tags)
        n = len(vq) - 1 - idx
        assert n <= 63
        a(f"s_waitcnt vmcnt({n})")

    def one_lane(ins):
        a("s_mov_b64 exec, 1")
        a(ins)
        a("s_mov_b64 exec, -1")

    nu = N0
    ST.stamp(2)
    lwait([("w", NW0 - 1)] + ([] if HS else ["x0"]))
    ST.stamp(3)
    a("s_barrier")
    ST.stamp(4)
    ST.cstamp(8)
    GAP = opt.get("gap", 4)
    N_RDY = opt.get("nrdy", 2)
    N_RL = opt.get("nrl", 5)
    N_XCC = N_RL + GAP
    N_CHK = N_XCC + GAP
    N_MODE = N_CHK + GAP
    N_TOUCH = opt.get("ntouch", N_MODE + 1)
    TSTEP = opt.get("tstep", 2)
    xq = [(i, e) for i in range(4) for e in range(2)] + [(4, 0)]
    X1 = opt.get("x1", 3)
    PER = opt.get("per", 3)
    PER2 = opt.get("per2", PER)
    pos = {}
    for n in range(30):
        umax = min(NS - 1, 2 * n - 1 + RING_UNITS, 2 * n + 1 + LA)
        if HS and n < 2:
            umax = min(umax, RING_UNITS - 1)
        k = 0
        while nu <= umax and k < (opt.get("per0", 0) if (HS and n == 0) else (PER2 if 16 <= nu < 32 else PER)):
            w_unit(nu); nu += 1; k += 1
        assert nu >= min(NS, 2 * (n + 2)), (n, nu)
        if n >= X1:
            for _ in range(opt.get("xper", 2)):
                if xq:
                    x_piece(1, *xq.pop(0)); vq.append("x1")
        if n == N_RDY:
            a("s_cmp_eq_u32 s55, 2")
            a("s_cbranch_scc0 L_NORDY")
            a(f"s_waitcnt vmcnt({len(vq) - reset_pos})")
            one_lane("buffer_store_dword v41, v40, s[32:35], s60 offen sc1")
            a.label("L_NORDY")
        if n == N_RL:
            a("s_cmp_eq_u32 s55, 0")
            a("s_cbranch_scc1 L_NORL")
            one_lane("buffer_load_dword v44, v40, s[32:35], s60 offen sc1")
            a.label("L_NORL")
            pos["rl"] = len(vq)
        if n == N_XCC:
            a("s_cmp_eq_u32 s55, 0")
            a("s_cbranch_scc1 L_NOXCC")
            a(f"s_waitcnt vmcnt({len(vq) - pos['rl']})")
            a(f"s_mov_b32 s63, {SPIN_LIMIT}")
            a.label("L_RCHK")
            a("v_readfirstlane_b32 s48, v44")
            a("s_cmp_lg_u32 s48, 0")
            a("s_cbranch_scc1 L_ROK")
            a("s_sub_u32 s63, s63, 1")
            a("s_cmp_eq_u32 s63, 0")
            a("s_cbranch_scc1 L_ROK")
            a("s_sleep 4")
            one_lane("buffer_load_dword v44, v40, s[32:35], s60 offen sc1")
            a("s_waitcnt vmcnt(0)")
            a("s_branch L_RCHK")
            a.label("L_ROK")
            one_lane("buffer_store_dword v41, v40, s[28:31], s59 offen offset:64 sc1")
            a.label("L_NOXCC")
        if n == N_CHK:
            a("s_cmp_eq_u32 s55, 0")
            a("s_cbranch_scc1 L_NOCHK")
            a("buffer_load_dword v44, v50, s[28:31], s58 offen offset:64 sc1")
            a.label("L_NOCHK")
            pos["chk"] = len(vq)
        if n == N_MODE:
            a("s_cmp_eq_u32 s55, 0")
            a("s_cbranch_scc1 L_NOMODE")
            a(f"s_waitcnt vmcnt({len(vq) - pos['chk']})")
            a(f"s_mov_b32 s63, {SPIN_LIMIT}")
            a.label("L_HCHK")
            a("v_cmp_eq_u32 vcc, 0, v44")
            a("s_cmp_eq_u64 vcc, 0")
            a("s_cbranch_scc1 L_HOK")
            a("s_sub_u32 s63, s63, 1")
            a("s_cmp_eq_u32 s63, 0")
            a("s_cbranch_scc1 L_HOK")
            a("s_sleep 4")
            a("buffer_load_dword v44, v50, s[28:31], s58 offen offset:64 sc1")
            a("s_waitcnt vmcnt(0)")
            a("s_branch L_HCHK")
            a.label("L_HOK")
            a("v_cmp_ne_u32 vcc, v41, v44")
            a("s_cmp_eq_u64 vcc, 0")
            a("s_cselect_b32 s61, 1, 0")
            if opt.get("forceslow"):
                a("s_mov_b32 s61, 0")
            a("v_mov_b32 v45, s61")
            a(f"v_mov_b32 v46, {MODE_LDS}")
            a("ds_write_b32 v46, v45")
            a("s_waitcnt lgkmcnt(0)")
            a.label("L_NOMODE")
        if n == N_MODE + 1:
            a(f"v_mov_b32 v46, {MODE_LDS}")
            a("ds_read_b32 v45, v46")
            a("s_waitcnt lgkmcnt(0)")
            a("v_readfirstlane_b32 s61, v45")
            a("s_lshl_b32 s49, s61, 2")
            a("s_add_u32 s55, s49, s45")
        if opt.get("touch", 1):
            for w in range(4):
                if n == N_TOUCH + TSTEP * w:
                    a(f"s_cmp_eq_u32 s55, {4 + w}")
                    a(f"s_cbranch_scc0 L_NOTOUCH{w}")
                    one_lane("buffer_load_dword v43, v40, s[28:31], s62 offen")
                    a("buffer_load_dword v48, v42, s[28:31], s57 offen")
                    a.label(f"L_NOTOUCH{w}")
        need = [("w", min(NS - 1, 2 * (n + 1) + 1))]
        if HS and n == 0:
            need.append("x0")
        if n + 1 == AV1:
            assert not xq
            need.append("x1")
        lwait(need)
        a("s_barrier")
    assert nu == NS
    assert N_MODE < B_MODE and N_TOUCH > N_MODE and N_TOUCH + 3 * TSTEP < 30
    ST.stamp(5)
    ST.cstamp(9)
    if ST.on:
        a("s_getreg_b32 s76, hwreg(HW_REG_XCC_ID)")
        a("s_add_u32 s76, s76, 1000")
    tail_setup()
    a("s_barrier")
    ST.stamp(14)
    a("s_cmp_eq_u32 s61, 1")
    a("s_cbranch_scc1 L_POLLFAST")
    a("s_branch L_POLLSLOW")
    a.label("L_CODE_END")
    return NV


def main():
    opt = {}
    for arg in sys.argv[2:]:
        k, v = arg.split("=")
        opt[k] = int(v)
    a = Asm()
    nv = gen(a, opt)
    out = HEADER
    out += f"; @launch grid=(256,1,1) block=(512,1,1) lds={LDS_BYTES}\n"
    out += '.amdgcn_target "amdgcn-amd-amdhsa--gfx950"\n.text\n'
    out += a.text()
    out += '.section .rodata,"a"\n'
    out += kd(KNAME, nv, 102 if (opt.get("stamps") or opt.get("fixed")) else 64)
    open(sys.argv[1], "w").write(out)


if __name__ == "__main__":
    main()
```

```python
import sys, struct
from gen2 import Asm, vr, srd, Stamps, kd, HEADER, KNAME, f2u

PASSES = [(0, 0), (1, 0), (0, 1), (1, 1)]
J = 16
W_BYTES = 31 * 512 * 512 * 2
OUT_BYTES = 2 * 485 * 512 * 2
RBOX = 16384
EX_BYTES = 256 * RBOX
FLAG_OFF = 3 * EX_BYTES
WS_BYTES = 3 * EX_BYTES + 16 * 1024
PLANE = 34 * 1024
XLDS = 2 * PLANE
RING_UNITS = 22
HALF = 11
RING_BASE = XLDS
MODE_LDS = XLDS + RING_UNITS * 4096
TL = MODE_LDS + 256
LDS_BYTES = MODE_LDS + 512
SPIN_LIMIT = 40000


def steps_list():
    st = []
    for cb, p in PASSES:
        for i in range(16 - p):
            st.append((cb, p, i, 2 * i + p))
    return st


def gen(a, opt):
    RX = 32
    loader_ctx = [False]
    ST = Stamps(a, opt.get("stamps", 0))
    if "probe" in opt:
        class P:
            on = False
            def init(self): pass
            def cstamp(self, i): pass
            def dump(self, *x): pass
            def stamp(self, i):
                if i == opt["probe"] and not loader_ctx[0]:
                    a("s_memrealtime s[64:65]")
        ST = P()
        opt["fixed"] = 3000
    V_ACC = 16
    V_W = 80
    V_X = 92
    V_XA = V_X + 4 * RX
    V_WA = V_XA + 8
    V_PA = V_WA + 2
    V_FA = V_WA + 3
    V_RA = V_WA + 4
    NV = V_WA + 5
    st = steps_list()
    NS = len(st)
    N0 = opt.get("n0", 4)
    LA = opt.get("la", 20)
    HS = opt.get("hs", 4)
    FS = opt.get("fs", 1)
    CBSW = opt.get("cbswap", 2)

    a.raw(f".globl {KNAME}")
    a.raw(".p2align 12")
    a.raw(".p2align 8")
    a.raw(f".type {KNAME},@function")
    a.label(KNAME)
    a("s_cmp_ge_u32 s2, 256")
    a("s_cbranch_scc1 L_END0")
    ST.init()
    ST.stamp(0)
    if opt.get("fixed"):
        a("s_memrealtime s[64:65]")
    a("s_load_dwordx8 s[4:11], s[0:1], 0")
    a("s_load_dwordx8 s[12:19], s[0:1], 32")
    a("v_lshrrev_b32 v16, 6, v0")
    a("v_and_b32 v17, 63, v0")
    MAP = opt.get("map", 1)
    if MAP == 1:
        a("s_and_b32 s42, s2, 3")
        a("v_readfirstlane_b32 s40, v16")
        a("s_lshl_b32 s42, s42, 1")
        a("s_lshr_b32 s48, s2, 7")
        a("s_add_u32 s42, s42, s48")
        a("s_bfe_u32 s47, s2, 0x40003")
        a("s_bfe_u32 s43, s2, 0x10002")
        a("s_and_b32 s41, s47, 7")
        a("s_lshr_b32 s44, s47, 3")
    elif MAP == 0:
        a("s_and_b32 s42, s2, 7")
        a("v_readfirstlane_b32 s40, v16")
        a("s_bfe_u32 s47, s2, 0x40003")
        a("s_lshr_b32 s43, s2, 7")
        a("s_and_b32 s41, s47, 7")
        a("s_lshr_b32 s44, s47, 3")
    else:
        a("s_and_b32 s47, s2, 15")
        a("v_readfirstlane_b32 s40, v16")
        a("s_bfe_u32 s42, s2, 0x30004")
        a("s_lshr_b32 s43, s2, 7")
        a("s_and_b32 s41, s47, 7")
        a("s_lshr_b32 s44, s47, 3")
    a("s_and_b32 s45, s40, 3")
    a("s_lshl_b32 s46, s43, 3")
    a("s_add_u32 s46, s46, s42")
    a("s_mul_i32 s52, s43, 1024000")
    a("s_lshl_b32 s48, s44, 19")
    a("s_add_u32 s52, s52, s48")
    a("s_lshl_b32 s48, s41, 7")
    a("s_add_u32 s52, s52, s48")
    a("s_and_b32 s48, s41, 1")
    a("s_lshl_b32 s48, s48, 14")
    a("s_sub_u32 s52, s52, s48")
    a("s_lshl_b32 s48, s45, 15")
    a("s_add_u32 s60, s52, s48")
    a("s_lshl_b32 s61, s45, 11")
    a("s_and_b32 s48, s42, %d" % (1 if opt.get("xswap", 1) else 0))
    a("s_lshl_b32 s49, s48, 18")
    a("s_add_u32 s50, s60, s49")
    a("s_xor_b32 s49, s49, 0x40000")
    a("s_add_u32 s60, s60, s49")
    a("s_lshl_b32 s49, s48, 14")
    a("s_add_u32 s51, s61, s49")
    a("s_xor_b32 s49, s49, 0x4000")
    a("s_add_u32 s61, s61, s49")
    a("v_lshrrev_b32 v18, 4, v17")
    a("v_lshlrev_b32 v18, 12, v18")
    a("v_bfe_u32 v19, v17, 3, 1")
    a("v_lshl_add_u32 v18, v19, 11, v18")
    a("v_and_b32 v19, 7, v17")
    a("v_lshl_add_u32 v22, v19, 4, v18")
    a("s_lshl_b32 s48, s45, 5")
    a("v_xor_b32 v20, s48, v22")
    a("v_xor_b32 v21, 0x800, v20")
    a("s_add_u32 s48, s43, 1")
    a("s_mul_i32 s22, s48, 1024000")
    a("s_mov_b32 s23, 0x20000")
    a("s_cmp_ge_u32 s40, 4")
    a("s_cbranch_scc0 L_COMPUTE")

    XB = {"B": (60, 61)}

    def x_piece(p, i, e):
        if i < 4:
            ss, sl = (50, 51) if i < 2 else XB["B"]
            a(f"s_add_u32 m0, s{sl}, {p*PLANE + (i & 1)*8192 + e*1024}")
            a(f"s_add_u32 s48, s{ss}, {p*1024 + (i & 1)*131072 + e*16384}")
            if (i & 1) == 0 and e == 0:
                a("s_max_i32 s48, s48, 0")
            a(f"buffer_load_dwordx4 v{20 + (i & 1)}, s[20:23], s48 offen lds")
        else:
            a(f"s_add_u32 m0, s53, {p*PLANE}")
            a(f"s_add_u32 s48, s52, {p*1024}")
            a("buffer_load_dwordx4 v22, s[20:23], s48 offen lds")

    def gb_loads():
        a("s_lshl_b32 s48, s42, 7")
        a("s_lshl_b32 s49, s47, 3")
        a("s_add_u32 s48, s48, s49")
        a("s_load_dwordx2 s[8:9], s[8:9], s48")
        a("s_load_dwordx2 s[10:11], s[10:11], s48")
        a("s_load_dwordx2 s[12:13], s[12:13], s48")

    def other_srds():
        srd(a, 28, 18, 19, WS_BYTES)
        srd(a, 36, 14, 15, OUT_BYTES)

    def flag_area(dst):
        a(f"s_lshl_b32 s{dst}, s46, 10")
        a(f"s_add_u32 s{dst}, s{dst}, {FLAG_OFF}")

    def own_box(dst):
        a(f"s_lshl_b32 s{dst}, s46, 4")
        a(f"s_add_u32 s{dst}, s{dst}, s47")
        a(f"s_lshl_b32 s{dst}, s{dst}, 14")

    c1 = -2.0 * 1.4426950408889634 * 0.7978845608028654
    c2 = c1 * 0.044715

    def tail_setup():
        a("s_lshl_b32 s56, s46, 4")
        a("s_lshr_b32 s49, s40, 2")
        a("s_lshl_b32 s49, s49, 3")
        a("s_add_u32 s56, s56, s49")
        a("s_bfe_u32 s49, s40, 0x10001")
        a("s_add_u32 s56, s56, s49")
        a("s_lshl_b32 s56, s56, 14")
        a("s_lshl_b32 s49, s47, 10")
        a("s_add_u32 s56, s56, s49")
        flag_area(60)
        a("s_lshr_b32 s49, s47, 2")
        a("s_lshl_b32 s49, s49, 6")
        a("s_add_u32 s60, s60, s49")
        a("s_lshr_b32 s49, s40, 1")
        a("s_lshl_b32 s49, s49, 4")
        a("s_add_u32 s60, s60, s49")
        a("v_and_b32 v3, 7, v0")
        a("v_lshlrev_b32 v24, 5, v3")
        a("v_and_b32 v3, 3, v0")
        a("v_lshlrev_b32 v3, 2, v3")
        a("v_bfe_u32 v15, v0, 5, 1")
        a("v_and_b32 v1, 31, v0")
        a("v_lshlrev_b32 v1, 4, v1")
        a("v_lshl_add_u32 v1, v15, 16, v1")
        a("s_and_b32 s49, s40, 1")
        a("s_lshl_b32 s49, s49, 9")
        a("v_add_u32 v1, s49, v1")
        a("v_and_b32 v2, 15, v0")
        a("v_lshl_add_u32 v2, v2, 4, v15")
        a("v_bfe_u32 v15, v0, 4, 1")
        a("v_lshl_add_u32 v2, v15, 1, v2")
        a("s_lshr_b32 s49, s40, 2")
        a("s_lshl_b32 s49, s49, 8")
        a("s_xor_b32 s48, s45, 2")
        a("s_lshl_b32 s48, s48, 2")
        a("s_add_u32 s49, s49, s48")
        a("v_add_u32 v2, s49, v2")
        a("s_movk_i32 s49, 485")
        a("v_cmp_gt_u32 s[24:25], s49, v2")
        a("s_mul_i32 s49, s43, 485")
        a("v_add_u32 v2, s49, v2")
        a("v_lshlrev_b32 v2, 10, v2")
        a("s_lshl_b32 s48, s42, 7")
        a("s_lshl_b32 s49, s47, 3")
        a("s_add_u32 s48, s48, s49")
        a("v_add_u32 v2, s48, v2")
        a("v_lshrrev_b32 v4, 3, v0")
        a("v_lshlrev_b32 v4, 2, v4")
        a(f"v_add_u32 v4, {TL}, v4")
        a("v_bfe_u32 v15, v0, 3, 3")
        a("v_lshl_add_u32 v5, v15, 2, v24")
        a(f"v_add_u32 v5, {TL}, v5")
        a(f"v_mov_b32 v12, {f2u(c1):#x}")
        a(f"v_mov_b32 v13, {f2u(c1):#x}")
        a(f"s_mov_b32 s20, {f2u(c2):#x}")
        a(f"s_mov_b32 s21, {f2u(c2):#x}")
        a("s_mov_b32 s22, 1.0")
        a("s_mov_b32 s23, 1.0")
        a(f"s_mov_b32 s26, {f2u(1.0/485.0):#x}")
        a("s_mov_b32 s27, 0xffff0000")
        a(f"s_mov_b32 s63, {SPIN_LIMIT}")
        a("s_waitcnt lgkmcnt(0)")
        a("s_lshl_b32 s4, s8, 16")
        a("s_and_b32 s5, s8, 0xffff0000")
        a("s_lshl_b32 s6, s9, 16")
        a("s_and_b32 s7, s9, 0xffff0000")
        a("s_mov_b32 vcc_lo, 0")
        a("s_mov_b32 vcc_hi, -1")
        a("v_mov_b32 v11, s10")
        a("v_mov_b32 v24, s11")
        a("v_mov_b32 v14, s12")
        a("v_mov_b32 v25, s13")
        a("v_cndmask_b32 v11, v11, v24, vcc")
        a("v_cndmask_b32 v14, v14, v25, vcc")
        a("s_mov_b32 vcc_lo, 0xffff0000")
        a("s_mov_b32 vcc_hi, 0xffff0000")
        a("v_lshlrev_b32 v24, 16, v11")
        a("v_lshlrev_b32 v25, 16, v14")
        a("v_and_b32 v11, 0xffff0000, v11")
        a("v_and_b32 v14, 0xffff0000, v14")
        a("v_cndmask_b32 v11, v24, v11, vcc")
        a("v_cndmask_b32 v14, v25, v14, vcc")

    loader_ctx[0] = True
    if opt.get("cpf", 1):
        a("s_getpc_b64 s[56:57]")
        a.label("L_PC")
        a("s_lshr_b32 s48, s2, 3")
        a("s_lshl_b32 s48, s48, 2")
        a("s_add_u32 s48, s48, s45")
        a("s_lshl_b32 s48, s48, 8")
        a("v_lshl_add_u32 v30, v17, 7, s48")
        a("v_min_u32 v30, L_CODE_END-L_PC-4, v30")
        a("s_mov_b64 exec, 3")
        a("global_load_dword v31, v30, s[56:57]")
        a("s_mov_b64 exec, -1")
    a("s_and_b32 s48, s45, 1")
    a("s_add_u32 s48, s48, 32")
    a("s_lshl_b32 s53, s48, 10")
    a("s_lshl_b32 s48, s48, 14")
    a("s_add_u32 s52, s52, s48")
    a("v_lshrrev_b32 v26, 3, v17")
    a("s_lshl_b32 s48, s45, 3")
    a("v_add_u32 v26, s48, v26")
    a("v_lshlrev_b32 v26, 10, v26")
    a("v_bfe_u32 v27, v17, 4, 1")
    a("s_and_b32 s48, s45, 1")
    a("s_lshl_b32 s48, s48, 1")
    a("v_or_b32 v27, s48, v27")
    a("v_lshlrev_b32 v27, 1, v27")
    a("v_xor_b32 v27, v27, v19")
    a("v_lshl_add_u32 v26, v27, 4, v26")
    a("s_lshl_b32 s48, s42, 7")
    a("s_lshl_b32 s49, s41, 16")
    a("s_add_u32 s48, s48, s49")
    if CBSW:
        a(f"s_lshl_b32 s49, s{44 if CBSW == 1 else 43}, 15")
        a("s_add_u32 s48, s48, s49")
    a("v_add_u32 v26, s48, v26")
    a("v_xor_b32 v27, 0x8000, v26")
    a("s_lshl_b32 s54, s45, 10")
    a(f"s_add_u32 s54, s54, {RING_BASE}")
    a("s_mov_b32 s26, %d" % W_BYTES)
    a("s_mov_b32 s27, 0x20000")
    a("s_waitcnt lgkmcnt(0)")
    ST.stamp(1)
    a("s_mov_b32 s24, s6")
    a("s_and_b32 s25, s7, 0xffff")
    a("s_mov_b32 s20, s4")
    a("s_and_b32 s21, s5, 0xffff")
    vq = []
    ghost = []

    def w_unit(u):
        cb, p, i, tap = st[u]
        a(f"s_add_u32 m0, s54, {(u % RING_UNITS) * 4096}")
        a(f"s_mov_b32 s48, {tap * 524288}")
        if opt.get("nodma") and u >= 10:
            vq.append(("w", u)); vq.append("ghost"); vq.pop(); ghost.append(len(vq) - 1)
            return
        a(f"buffer_load_dwordx4 v{26 + cb}, s[24:27], s48 offen lds")
        vq.append(("w", u))

    NW0 = max(2, HS)
    for u in range(NW0):
        w_unit(u)
    if HS:
        lx0 = [(i, 0) for i in range(4)] + [(4, 0)]
        cx0 = [(i, 1) for i in range(4)]
    else:
        lx0 = [(2, 0), (2, 1), (3, 0), (3, 1), (4, 0)]
        cx0 = [(0, 0), (0, 1), (1, 0), (1, 1)]
    for i, e in lx0:
        x_piece(0, i, e); vq.append("x0")
    for u in range(NW0, N0):
        w_unit(u)
    a("s_branch L_LOADLOOP")
    a.label("L_END0")
    a("s_endpgm")

    loader_ctx[0] = False
    a.label("L_COMPUTE")
    a("v_and_b32 v23, 15, v17")
    a("v_lshrrev_b32 v16, 4, v17")
    for d in range(2):
        a(f"v_add_u32 v18, {d}, v23")
        a("v_and_b32 v18, 7, v18")
        a("v_lshlrev_b32 v18, 1, v18")
        a("v_xor_b32 v18, v16, v18")
        a("v_lshlrev_b32 v18, 4, v18")
        a(f"v_lshl_add_u32 v{V_XA + 4*d}, v23, 11, v18")
        if CBSW:
            a(f"s_lshl_b32 s48, s{44 if CBSW == 1 else 43}, 6")
            a(f"v_xor_b32 v{V_XA + 4*d}, s48, v{V_XA + 4*d}")
    a("s_waitcnt lgkmcnt(0)")
    ST.stamp(1)
    a("s_mov_b32 s20, s4")
    a("s_and_b32 s21, s5, 0xffff")
    for i, e in cx0:
        x_piece(0, i, e)
    gb_loads()
    other_srds()
    for d in range(2):
        for z in range(1, 4):
            a(f"v_xor_b32 v{V_XA + 4*d + z}, {z << 6}, v{V_XA + 4*d}")
    a("v_lshrrev_b32 v18, 2, v23")
    a("v_lshl_add_u32 v18, v16, 3, v18")
    a("v_lshlrev_b32 v18, 7, v18")
    a("v_lshrrev_b32 v19, 3, v23")
    a("v_and_b32 v26, 1, v16")
    a("v_lshl_or_b32 v19, v26, 1, v19")
    a("v_xor_b32 v19, s40, v19")
    a("v_lshl_add_u32 v18, v19, 5, v18")
    a("v_and_b32 v19, 3, v23")
    a("v_lshl_add_u32 v18, v19, 3, v18")
    a(f"v_add_u32 v{V_WA}, {RING_BASE}, v18")
    a(f"v_add_u32 v{V_WA+1}, {RING_BASE + HALF*4096}, v18")
    a("s_lshl_b32 s48, s40, 2")
    a("v_add_u32 v6, s48, v16")
    a("v_lshlrev_b32 v6, 10, v6")
    a("v_lshl_add_u32 v6, v23, 4, v6")
    own_box(55)
    a("s_lshl_b32 s58, s46, 18")
    a("s_xor_b32 s48, s47, 1")
    a("s_lshl_b32 s48, s48, 14")
    a("s_lshl_b32 s49, s40, 12")
    a("s_add_u32 s48, s48, s49")
    a("s_and_b32 s49, s41, 1")
    a("s_lshl_b32 s59, s49, 4")
    a("s_sub_u32 s48, s48, s59")
    a(f"v_lshl_add_u32 v{V_PA}, v17, 4, s48")
    a("s_cmp_eq_u32 s44, 1")
    a(f"s_cselect_b32 s59, {(-8 * RBOX + 256) & 0xffffffff:#x}, 0")
    a("s_cselect_b32 s57, 0, 0x40000000")
    a("s_add_u32 s59, s59, s57")
    a("s_cmp_eq_u32 s49, 1")
    a("s_cselect_b32 s59, s59, 0")
    a("v_cmp_eq_u32 vcc, 0, v23")
    a("v_mov_b32 v18, s59")
    a("s_nop 0")
    a("v_cndmask_b32 v18, 0, v18, vcc")
    a(f"v_add_u32 v{V_PA}, v{V_PA}, v18")
    a("s_xor_b32 s48, s47, 1")
    a("s_lshl_b32 s48, s48, 5")
    a("s_lshl_b32 s57, s40, 3")
    a("s_add_u32 s48, s48, s57")
    a("s_add_u32 s48, s48, 512")
    a("s_lshl_b32 s49, s49, 8")
    a("s_or_b32 s49, s49, 4")
    a("v_and_b32 v18, 1, v17")
    a("v_mul_u32_u24 v18, s49, v18")
    a(f"v_xor_b32 v{V_FA}, s48, v18")
    flag_area(59)
    a("s_lshl_b32 s62, s40, 6")
    a("s_add_u32 s62, s62, s59")
    a("s_lshl_b32 s48, s44, 5")
    a("s_add_u32 s62, s62, s48")
    a("s_and_b32 s48, s41, 1")
    a("s_lshl_b32 s48, s48, 4")
    a("s_add_u32 s62, s62, s48")
    a("s_lshr_b32 s48, s41, 1")
    a("s_lshl_b32 s48, s48, 2")
    a("s_add_u32 s62, s62, s48")
    a("s_lshl_b32 s48, s40, 12")
    a(f"v_lshl_add_u32 v{V_RA}, v17, 4, s48")
    a("v_mov_b32 v8, 1")
    a("v_mov_b32 v9, 0")
    a(f"v_mov_b32 v7, {MODE_LDS}")
    def pad_walk(first, ret):
        if not opt.get("pads", 1):
            return
        a("s_mov_b64 exec, 0")
        for w in range(4):
            a(f"s_cmp_eq_u32 s45, {w}")
            a(f"s_cbranch_scc1 L_PAD{2 * w + first}")
        a.label(ret)
        a("s_mov_b64 exec, -1")

    pad_walk(1, "L_PADRETC")
    tail_setup()
    a("s_waitcnt vmcnt(0)")
    ST.stamp(2)
    a("s_barrier")
    ST.stamp(3)

    frags = []
    pass_off = {}
    for cb, p in PASSES:
        pass_off[(cb, p)] = len(frags)
        for f in range(16 - p + J - 1):
            frags.append((cb, p, f))
    AV1 = opt.get("av1", 11)
    B_MODE = opt.get("bmode", 20)
    LP = NS - 15
    FU = 4

    def x_avail(F):
        cb, p, f = frags[F]
        if p == 1:
            return AV1
        if HS and not (F < 31 and 8 <= f <= 15):
            return 1
        return 0

    blocks = []
    for i in range(HS):
        blocks.append((i, [j for j in range(J) if 8 <= i + j <= 15]))
    for i in range(HS):
        blocks.append((i, [j for j in range(J) if not 8 <= i + j <= 15]))
    for t in range(HS, LP):
        blocks.append((t, list(range(J))))
    HA = len(blocks)
    for t in range(LP, NS):
        blocks.append((t, list(range(8))))
    HB = len(blocks)
    for t in range(LP, NS - FU):
        blocks.append((t, list(range(8, 16))))
    NB = len(blocks)
    assert HS == 4
    bar_at = {opt.get("hsbar", 3): NW0 - 1, 2 * HS - 1: 5}
    for bi, (t, js) in enumerate(blocks):
        if 2 * HS <= bi < HA and t % 2 == 1:
            bar_at[bi] = t + 2
    bar_at[HA - 2] = LP + 3
    bar_at[HA + 2] = LP + 8
    bar_at[HA + 7] = NS - 1
    bar_list = [NW0 - 1] + [bar_at[k] for k in sorted(bar_at)]
    NWB = len(bar_list)

    def w_avail(u):
        return min(n for n, m in enumerate(bar_list) if m >= u)

    xorder = list(range(8, 16)) + list(range(8)) + list(range(16, len(frags)))
    S = dict(lds_q=[], waited=-1, bars=0, nx=0, nw=0, init=set())
    offL = pass_off[PASSES[-1]]
    slot = lambda f: V_X + 4 * ((offL + f) % RX)
    PA = [slot(k) for k in range(4)]
    RAW = [slot(4 + k) for k in range(4)]
    WF = [slot(30), slot(31), slot(8), slot(9)]
    PB = [slot(10 + k) for k in range(4)]

    def wreg(key):
        return WF[key - NB] if key >= NB else V_W + 4 * (key % 3)

    def wunit(key):
        return NS - FU + (key - NB) if key >= NB else blocks[key][0]

    def issue_x(F):
        cb, p, f = frags[F]
        d = f >> 4
        z = (f & 1) * 2 + cb
        r = V_X + 4 * (F % RX)
        assert S["bars"] >= x_avail(F)
        a(f"ds_read_b128 {vr(r,4)}, v{V_XA + 4*d + z} offset:{p*PLANE + (f>>1)*256}")
        S["lds_q"].append(("x", F))

    def issue_w(key, h):
        u = wunit(key)
        uu = u % RING_UNITS
        off = (uu % HALF) * 4096 + h * 512
        assert S["bars"] >= w_avail(u), (u, S["bars"])
        a(f"ds_read_b64_tr_b16 {vr(wreg(key) + 2*h,2)}, v{V_WA + uu // HALF} offset:{off}")
        S["lds_q"].append(("w", key, h))

    def wait_for(tags):
        q = S["lds_q"]
        idx = max(q.index(tg) for tg in tags)
        if idx <= S["waited"]:
            return 0
        n = len(q) - 1 - idx
        if n > 15:
            n = 15
            idx = len(q) - 1 - n
        a(f"s_waitcnt lgkmcnt({n})")
        S["waited"] = idx
        return 1

    def mfma(j, key, F):
        acc = V_ACC + 4 * j
        c = vr(acc, 4) if j in S["init"] else "0"
        S["init"].add(j)
        a(f"v_mfma_f32_16x16x32_bf16 {vr(acc,4)}, {vr(wreg(key),4)}, {vr(V_X + 4*(F % RX),4)}, {c}")

    slow_sites = []

    def store2(ins):
        k = len(slow_sites)
        slow_sites.append(ins)
        a(f"s_cbranch_scc0 L_SL{k}")
        a(ins)
        a.label(f"L_SB{k}")

    def emit_raw(op):
        if isinstance(op, tuple):
            if op[0] == "st":
                store2(op[1])
            elif op[0] == "wait":
                wait_for(op[1])
        else:
            a(op)

    issue_w(0, 0); issue_w(0, 1); S["nw"] = 1
    for k in range(8):
        issue_x(xorder[k]); S["nx"] += 1

    XPS = opt.get("xps", 3)
    mode_blk = next(bi for bi, (t, js) in enumerate(blocks) if bi >= 2 * HS and t == 2 * B_MODE + 1)
    FA = opt.get("fa", 4)
    rawq = []
    for bi, (t, js) in enumerate(blocks):
        cb, p, i, tap = st[t]
        off = pass_off[(cb, p)]
        fmin = off + (i if HS <= bi < HA else 0)
        if 2 * HS <= bi < HA and t % 8 == 4:
            ST.stamp(4 + t // 8)
        side = []
        nb = S["bars"]
        if bi in bar_at:
            side.append(("bar",)); nb += 1
        short_next = bi + 1 < NB and len(blocks[bi + 1][1]) == 8
        upto = bi + (2 if short_next else 1)
        if bi >= NB - 3:
            upto = min(NB + FU - 1, S["nw"] + 1)
        tmpw = S["nw"]
        while tmpw <= upto and tmpw < NB + FU and nb >= w_avail(wunit(tmpw)):
            side += [("w", tmpw, 0), ("w", tmpw, 1)]; tmpw += 1
        S["nw"] = tmpw
        assert tmpw > bi + 1 or tmpw == NB + FU, (bi, tmpw)
        tmp = S["nx"]
        lim = (len(js) - len(side) - 1) if len(js) == 8 else XPS
        cntx = 0
        while cntx < lim and tmp < len(frags) and xorder[tmp] - fmin < RX and nb >= x_avail(xorder[tmp]):
            side.append(("x", xorder[tmp])); tmp += 1; cntx += 1
        if bi == mode_blk:
            assert S["bars"] >= B_MODE
            side.append(("mode",))
        if bi == mode_blk + 2:
            wait_for([("mode",)])
            rawq += ["v_readfirstlane_b32 s61, v10", "s_nop 0", "s_cmp_eq_u32 s61, 1",
                     f"s_cselect_b32 s48, 0, {EX_BYTES}", "s_add_u32 s58, s58, s48", "s_lshl_b32 s48, s48, 1",
                     "s_add_u32 s55, s55, s48", "s_add_u32 s56, s56, s48", f"s_add_u32 s57, s56, {2 * RBOX}",
                     "s_cmp_eq_u32 s61, 1"]
        if bi == HB:
            rawq += [None] * 4
            for k in range(4):
                A = V_ACC + 8 * k
                rawq += [f"v_cvt_pk_bf16_f32 v{PA[k] + r}, v{A + 2*r}, v{A + 2*r + 1}" for r in range(4)]
                rawq.append(("st", f"buffer_store_dwordx4 {vr(PA[k], 4)}, v{V_PA}, s[28:31], s58 offen offset:{k*1024}"))
        if bi == HB + FA:
            assert not rawq
            rawq += ["s_waitcnt vmcnt(0)", ("st", f"buffer_store_dword v8, v{V_FA}, s[28:31], s59 offen")]
        fine = bi <= 2 * HS
        for k, j in enumerate(js):
            F = off + i + j
            if fine:
                wait_for([("w", bi, 0), ("w", bi, 1), ("x", F)])
            elif k == 0:
                wait_for([("w", bi, 0), ("w", bi, 1)] + [("x", off + i + jj) for jj in js[:len(js) // 2]])
            elif k == len(js) // 2:
                wait_for([("x", off + i + jj) for jj in js])
            mfma(j, bi, F)
            room = 2
            if side:
                room -= 1
                s = side.pop(0)
                if s[0] == "bar":
                    a("s_barrier"); S["bars"] += 1
                elif s[0] == "w":
                    issue_w(s[1], s[2])
                elif s[0] == "x":
                    issue_x(s[1]); S["nx"] += 1
                elif s[0] == "mode":
                    a("ds_read_b32 v10, v7")
                    S["lds_q"].append(("mode",))
            while rawq and room:
                op = rawq.pop(0); room -= 1
                if op is not None:
                    emit_raw(op)
        assert not side, (bi, side)
    assert S["nx"] == len(frags) and S["nw"] == NB + FU and not rawq
    assert S["bars"] == NWB - 1, (S["bars"], NWB)

    i0_ = st[NS - FU][2]
    wait_for([("w", NB + k, h) for k in range(FU) for h in range(2)] + [("x", len(frags) - 1)])
    seq = [(g_, k, j) for g_ in range(4) for k in range(FU) for j in (8 + 2 * g_, 9 + 2 * g_)]
    BX = opt.get("bx", 1)
    free = []
    pend = []
    cnt = 0
    U = lambda g_: V_ACC + 8 * g_
    for n_, (g_, k, j) in enumerate(seq):
        mfma(j, NB + k, offL + i0_ + k + j); cnt += 1
        if n_ == BX:
            a("s_barrier"); cnt += 1
            for q in range(4):
                a(f"ds_read_b128 {vr(RAW[q], 4)}, v{V_RA} offset:{q*1024}"); cnt += 1
                S["lds_q"].append(("r", q))
            free += [None] * opt.get('fdelay', 15)
            for q in range(4):
                free.append(("wait", [("r", q)]))
                for r in range(4):
                    free.append(f"v_lshlrev_b32 v{U(q) + 2*r}, 16, v{RAW[q] + r}")
                    free.append(f"v_and_b32 v{U(q) + 2*r + 1}, s27, v{RAW[q] + r}")
                free.append(("mark", q))
        if k == FU - 1 and j % 2 == 1:
            A = V_ACC + 4 * (j - 1)
            ops = [f"v_pk_add_f32 v[{U(g_) + 2*r}:{U(g_) + 2*r + 1}], v[{U(g_) + 2*r}:{U(g_) + 2*r + 1}], v[{A + 2*r}:{A + 2*r + 1}]" for r in range(4)]
            ops += [f"v_cvt_pk_bf16_f32 v{PB[g_] + r}, v{U(g_) + 2*r}, v{U(g_) + 2*r + 1}" for r in range(4)]
            ops.append(("st", f"buffer_store_dwordx4 {vr(PB[g_], 4)}, v6, s[28:31], s55 offen offset:{g_*256}"))
            pend += [(cnt + 9, g_, op) for op in ops]
        room = opt.get("froom", 3)
        while room:
            unp = {m[1] for m in free if isinstance(m, tuple) and m[0] == "mark"}
            if pend and pend[0][0] <= cnt and pend[0][1] not in unp and n_ > BX:
                emit_raw(pend.pop(0)[2]); cnt += 1
            elif free:
                op = free.pop(0)
                if isinstance(op, tuple) and op[0] == "mark":
                    continue
                if op is not None:
                    nl = len(a.lines); emit_raw(op); cnt += len(a.lines) - nl
            elif pend:
                a("s_nop 1"); cnt += 2
                break
            else:
                break
            room -= 1
    ST.stamp(12)
    for op in free:
        if op is not None and not (isinstance(op, tuple) and op[0] == "mark"):
            nl = len(a.lines); emit_raw(op); cnt += len(a.lines) - nl
    while pend:
        if pend[0][0] > cnt:
            a(f"s_nop {pend[0][0] - cnt - 1}"); cnt = pend[0][0]
        emit_raw(pend.pop(0)[2]); cnt += 1
    ST.stamp(13)
    a("s_barrier")
    a("s_waitcnt vmcnt(0)")
    store2("buffer_store_dword v8, v9, s[28:31], s62 offen")
    ST.stamp(14)
    D = 48
    a.label("L_POLL")
    a("buffer_load_dword v15, v3, s[28:31], s60 offen sc1")
    a("s_sub_u32 s63, s63, 1")
    a("s_waitcnt vmcnt(0)")
    a("v_cmp_ne_u32 vcc, 1, v15")
    a("s_cmp_eq_u64 vcc, 0")
    a("s_cbranch_scc0 L_POLLMORE")
    a.label("L_GOT")
    ST.stamp(15)
    for q in range(2):
        a(f"buffer_load_dwordx4 {vr(D+4*q,4)}, v1, s[28:31], s{56+q} offen sc1")
    for q in range(2):
        a(f"s_waitcnt vmcnt({1-q})")
        if q == 1:
            ST.stamp(10)
        T = 16 if q == 0 else 24
        for k in range(4):
            a(f"v_lshlrev_b32 v{T+2*k}, 16, v{D+4*q+k}")
            a(f"v_and_b32 v{T+2*k+1}, s27, v{D+4*q+k}")
        if q:
            for k in range(4):
                a(f"v_pk_add_f32 v[{16+2*k}:{17+2*k}], v[{16+2*k}:{17+2*k}], v[{24+2*k}:{25+2*k}]")
    a("s_nop 1")
    for r in range(4):
        a(f"v_permlane32_swap_b32 v{16+r}, v{20+r}")
    a("v_pk_add_f32 v[16:17], v[16:17], v[20:21]")
    a("v_pk_add_f32 v[18:19], v[18:19], v[22:23]")
    a("v_pk_add_f32 v[16:17], v[16:17], s[4:5]")
    a("v_pk_add_f32 v[18:19], v[18:19], s[6:7]")
    for r in range(4):
        a(f"v_cndmask_b32 v{20+r}, 0, v{16+r}, s[24:25]")
    a("v_pk_mul_f32 v[24:25], v[20:21], v[20:21]")
    a("v_pk_mul_f32 v[26:27], v[22:23], v[22:23]")
    a("v_permlane32_swap_b32 v20, v22")
    a("v_permlane32_swap_b32 v21, v23")
    a("v_permlane32_swap_b32 v24, v26")
    a("v_permlane32_swap_b32 v25, v27")
    a("v_add_f32 v20, v20, v22")
    a("v_add_f32 v21, v21, v23")
    a("v_add_f32 v24, v24, v26")
    a("v_add_f32 v25, v25, v27")
    a("s_nop 0")
    a("v_permlane16_swap_b32 v20, v21")
    a("v_permlane16_swap_b32 v24, v25")
    a("v_add_f32 v20, v20, v21")
    a("v_add_f32 v24, v24, v25")
    a("s_nop 0")
    a("v_add_f32_dpp v28, v20, v20 row_ror:8 row_mask:0xf bank_mask:0x3")
    a("v_add_f32_dpp v28, v24, v24 row_ror:8 row_mask:0xf bank_mask:0xc")

    def red8(r):
        for mod in ("row_half_mirror", "quad_perm:[1,0,3,2]", "quad_perm:[2,3,0,1]"):
            a("s_nop 1")
            a(f"v_add_f32_dpp v{r}, v{r}, v{r} {mod} row_mask:0xf bank_mask:0xf")

    red8(28)
    a("ds_write_b32 v4, v28")
    a("s_waitcnt lgkmcnt(0)")
    a("s_barrier")
    a("ds_read_b32 v28, v5")
    a("s_waitcnt lgkmcnt(0)")
    a("v_mul_f32 v28, s26, v28")
    red8(28)
    a("s_nop 1")
    a("v_mov_b32_dpp v29, v28 row_ror:8 row_mask:0xf bank_mask:0xf")
    a("v_fma_f32 v29, -v28, v28, v29")
    a("v_max_f32 v29, 0, v29")
    a(f"v_add_f32 v29, {f2u(1e-5):#x}, v29")
    a("v_rsq_f32 v29, v29")
    a("s_nop 0")
    a("v_mul_f32 v29, v11, v29")
    a("v_fma_f32 v28, -v28, v29, v14")
    for r in range(4):
        a(f"v_readlane_b32 s{48+r}, v29, {16*r}")
    for r in range(4):
        a(f"v_readlane_b32 s{52+r}, v28, {16*r}")
    a("v_pk_mul_f32 v[16:17], v[16:17], s[48:49]")
    a("v_pk_mul_f32 v[18:19], v[18:19], s[50:51]")
    a("v_pk_add_f32 v[16:17], v[16:17], s[52:53]")
    a("v_pk_add_f32 v[18:19], v[18:19], s[54:55]")
    a("v_pk_mul_f32 v[20:21], v[16:17], v[16:17]")
    a("v_pk_mul_f32 v[22:23], v[18:19], v[18:19]")
    a("v_pk_fma_f32 v[20:21], v[20:21], s[20:21], v[12:13]")
    a("v_pk_fma_f32 v[22:23], v[22:23], s[20:21], v[12:13]")
    a("v_pk_mul_f32 v[20:21], v[20:21], v[16:17]")
    a("v_pk_mul_f32 v[22:23], v[22:23], v[18:19]")
    for r in range(4):
        a(f"v_exp_f32 v{20+r}, v{20+r}")
    a("s_nop 0")
    a("v_pk_add_f32 v[20:21], v[20:21], s[22:23]")
    a("v_pk_add_f32 v[22:23], v[22:23], s[22:23]")
    for r in range(4):
        a(f"v_rcp_f32 v{20+r}, v{20+r}")
    a("s_nop 0")
    a("v_pk_mul_f32 v[16:17], v[16:17], v[20:21]")
    a("v_pk_mul_f32 v[18:19], v[18:19], v[22:23]")
    a("v_cvt_pk_bf16_f32 v20, v16, v17")
    a("v_cvt_pk_bf16_f32 v21, v18, v19")
    a("s_and_saveexec_b64 s[26:27], s[24:25]")
    a("s_cbranch_execz L_FIN")
    a("buffer_store_dwordx2 v[20:21], v2, s[36:39], 0 offen")
    a.label("L_FIN")
    if opt.get("probe") == 11:
        a("s_memrealtime s[64:65]")
    if opt.get("probe") == 17:
        a("s_waitcnt vmcnt(0)")
        a("s_memrealtime s[64:65]")
    if opt.get("fixed"):
        a("s_waitcnt vmcnt(0) lgkmcnt(0)")
        a.label("L_FIX")
        a("s_memrealtime s[66:67]")
        a("s_waitcnt lgkmcnt(0)")
        a("s_sub_u32 s66, s66, s64")
        a(f"s_cmp_lt_u32 s66, {opt['fixed']}")
        a("s_cbranch_scc1 L_FIX")
    if ST.on:
        a("s_mov_b64 exec, -1")
        ST.stamp(11)
        a("s_waitcnt vmcnt(0)")
        a("s_cmp_ge_u32 s40, 4")
        a("s_cbranch_scc0 L_ST2")
        ST.stamp(7)
        a.label("L_ST2")
        a("s_barrier")
        ST.dump(18, 40)
    a("s_endpgm")

    a.label("L_POLLMORE")
    a("s_cmp_eq_u32 s63, 0")
    a("s_cbranch_scc1 L_GOT")
    a("s_cmp_eq_u32 s61, 1")
    a("s_cbranch_scc1 L_POLL")
    a("s_sleep 8")
    a("s_branch L_POLL")
    for k, ins in enumerate(slow_sites):
        a.label(f"L_SL{k}")
        a(ins + " sc1")
        a(f"s_branch L_SB{k}")

    loader_ctx[0] = True
    a.label("L_LOADLOOP")
    a("s_mov_b32 s4, s60")
    a("s_mov_b32 s5, s61")
    XB["B"] = (4, 5)
    other_srds()
    flag_area(58)
    for r in range(40, 44):
        a(f"v_mov_b32 v{r}, 0")
    a("v_lshlrev_b32 v49, 4, v17")
    a("s_cmp_eq_u32 s47, 0")
    a("s_cselect_b32 s55, 2, 1")
    a("s_cmp_eq_u32 s40, 4")
    a("s_cselect_b32 s55, s55, 0")
    a("s_cmp_eq_u32 s55, 2")
    a("s_cbranch_scc0 L_NORESET")
    a("buffer_store_dwordx4 v[40:43], v49, s[28:31], s58 offen sc1")
    a.label("L_NORESET")
    reset_pos = len(vq)
    gb_loads()
    srd(a, 32, 16, 17, 256)
    own_box(62)
    a("s_lshl_b32 s60, s46, 4")
    a("v_lshlrev_b32 v42, 7, v17")
    a("s_lshl_b32 s57, s45, 12")
    a("s_add_u32 s57, s57, s62")
    a("s_getreg_b32 s48, hwreg(HW_REG_XCC_ID, 0, 4)")
    a("s_or_b32 s48, s48, 0x10")
    a("v_mov_b32 v41, s48")
    a("s_lshl_b32 s59, s47, 2")
    a("s_add_u32 s59, s59, s58")
    a("v_and_b32 v50, 15, v17")
    a("v_lshlrev_b32 v50, 2, v50")

    def lwait(tags):
        idx = max(k for k, tg in enumerate(vq) if tg in tags)
        n = len(vq) - 1 - idx
        assert n <= 63
        a(f"s_waitcnt vmcnt({n})")

    def one_lane(ins):
        a("s_mov_b64 exec, 1")
        a(ins)
        a("s_mov_b64 exec, -1")

    nu = N0
    pad_walk(2, "L_PADRETL")
    ST.stamp(2)
    lwait([("w", NW0 - 1)] + ([] if HS else ["x0"]))
    ST.stamp(3)
    a("s_barrier")
    ST.stamp(4)
    ST.cstamp(8)
    GAP = opt.get("gap", 4)
    opt.setdefault("per0", 4)
    N_RDY = opt.get("nrdy", 2)
    N_RL = opt.get("nrl", 5)
    N_XCC = N_RL + GAP
    N_CHK = N_XCC + GAP
    N_MODE = N_CHK + GAP
    N_TOUCH = opt.get("ntouch", 19)
    xq = [(i, e) for i in range(4) for e in range(2)] + [(4, 0)]
    X1 = opt.get("x1", 3)
    PER = opt.get("per", 3)
    PER2 = opt.get("per2", PER)
    pos = {}
    for n in range(NWB - 1):
        umax = min(NS - 1, 2 * n - 1 + RING_UNITS, 2 * n + 1 + LA)
        if HS and n < 2:
            umax = min(umax, RING_UNITS - 1)
        k = 0
        while nu <= umax and k < (opt.get("per0", 0) if (HS and n == 0) else (opt.get("perA", 2) if n <= opt.get("nA", 0) else PER)):
            w_unit(nu); nu += 1; k += 1
        assert nu > bar_list[n + 1], (n, nu)
        if n >= X1:
            for _ in range(opt.get("xper", 2)):
                if xq:
                    x_piece(1, *xq.pop(0)); vq.append("x1")
        if n == N_RDY and not opt.get("nohs"):
            a("s_cmp_eq_u32 s55, 2")
            a("s_cbranch_scc0 L_NORDY")
            a(f"s_waitcnt vmcnt({len(vq) - reset_pos})")
            one_lane("buffer_store_dword v41, v40, s[32:35], s60 offen sc1")
            a.label("L_NORDY")
        if n == N_RL and not opt.get("nohs"):
            a("s_cmp_eq_u32 s55, 0")
            a("s_cbranch_scc1 L_NORL")
            one_lane("buffer_load_dword v44, v40, s[32:35], s60 offen sc1")
            a.label("L_NORL")
            pos["rl"] = len(vq)
        if n == N_XCC and not opt.get("nohs"):
            a("s_cmp_eq_u32 s55, 0")
            a("s_cbranch_scc1 L_NOXCC")
            a(f"s_waitcnt vmcnt({len(vq) - pos['rl']})")
            a(f"s_mov_b32 s63, {SPIN_LIMIT}")
            a.label("L_RCHK")
            a("v_readfirstlane_b32 s48, v44")
            a("s_cmp_lg_u32 s48, 0")
            a("s_cbranch_scc1 L_ROK")
            a("s_sub_u32 s63, s63, 1")
            a("s_cmp_eq_u32 s63, 0")
            a("s_cbranch_scc1 L_ROK")
            a("s_sleep 4")
            one_lane("buffer_load_dword v44, v40, s[32:35], s60 offen sc1")
            a("s_waitcnt vmcnt(0)")
            a("s_branch L_RCHK")
            a.label("L_ROK")
            one_lane("buffer_store_dword v41, v40, s[28:31], s59 offen offset:256 sc1")
            a.label("L_NOXCC")
        if n == N_CHK and not opt.get("nohs"):
            a("s_cmp_eq_u32 s55, 0")
            a("s_cbranch_scc1 L_NOCHK")
            a("buffer_load_dword v44, v50, s[28:31], s58 offen offset:256 sc1")
            a.label("L_NOCHK")
            pos["chk"] = len(vq)
        if n == N_MODE and opt.get("nohs"):
            a("v_mov_b32 v45, 1")
            a(f"v_mov_b32 v46, {MODE_LDS}")
            a("ds_write_b32 v46, v45")
            a("s_waitcnt lgkmcnt(0)")
        if n == N_MODE and not opt.get("nohs"):
            a("s_cmp_eq_u32 s55, 0")
            a("s_cbranch_scc1 L_NOMODE")
            a(f"s_waitcnt vmcnt({len(vq) - pos['chk']})")
            a(f"s_mov_b32 s63, {SPIN_LIMIT}")
            a.label("L_HCHK")
            a("v_cmp_eq_u32 vcc, 0, v44")
            a("s_cmp_eq_u64 vcc, 0")
            a("s_cbranch_scc1 L_HOK")
            a("s_sub_u32 s63, s63, 1")
            a("s_cmp_eq_u32 s63, 0")
            a("s_cbranch_scc1 L_HOK")
            a("s_sleep 4")
            a("buffer_load_dword v44, v50, s[28:31], s58 offen offset:256 sc1")
            a("s_waitcnt vmcnt(0)")
            a("s_branch L_HCHK")
            a.label("L_HOK")
            a("v_cmp_ne_u32 vcc, v41, v44")
            a("s_cmp_eq_u64 vcc, 0")
            a("s_cselect_b32 s61, 1, 0")
            if opt.get("forceslow"):
                a("s_mov_b32 s61, 0")
            a("v_mov_b32 v45, s61")
            a(f"v_mov_b32 v46, {MODE_LDS}")
            a("ds_write_b32 v46, v45")
            a("s_waitcnt lgkmcnt(0)")
            a.label("L_NOMODE")
        if n == N_MODE + 1:
            a(f"v_mov_b32 v46, {MODE_LDS}")
            a("ds_read_b32 v45, v46")
            a("s_waitcnt lgkmcnt(0)")
            a("v_readfirstlane_b32 s61, v45")
            a("s_and_b32 s49, s61, s55")
            a("s_cmp_eq_u32 s49, 1")
            a("s_cbranch_scc0 L_NOFT")
            a("s_mov_b64 exec, 0xff")
            a("buffer_load_dword v43, v42, s[28:31], s58 offen")
            a("s_mov_b64 exec, -1")
            a.label("L_NOFT")
        if opt.get("touch", 1) and n == N_TOUCH:
            a("s_mov_b32 exec_hi, 0")
            a(f"s_xor_b32 s48, s57, {RBOX}")
            a("buffer_load_dword v48, v42, s[28:31], s48 offen"); vq.append("touch")
            a("s_mov_b64 exec, -1")
        need = [("w", bar_list[n + 1])]
        if HS and n == 0:
            need.append("x0")
        if n + 1 == AV1:
            assert not xq
            need.append("x1")
        if opt.get("trace"):
            a("s_memrealtime s[66:67]")
            a("s_waitcnt lgkmcnt(0)")
            a(f"v_writelane_b32 v60, s66, {n}")
        lwait(need)
        if opt.get("trace"):
            a("s_memrealtime s[66:67]")
            a("s_waitcnt lgkmcnt(0)")
            a(f"v_writelane_b32 v61, s66, {n}")
        a("s_barrier")
        if opt.get("trace"):
            a("s_memrealtime s[66:67]")
            a("s_waitcnt lgkmcnt(0)")
            a(f"v_writelane_b32 v62, s66, {n}")
    if opt.get("trace"):
        a(f"s_add_u32 s96, s18, {128<<20}")
        a("s_addc_u32 s97, s19, 0")
        a("s_and_b32 s97, s97, 0xffff")
        a("s_mov_b32 s98, 0x1000000")
        a("s_mov_b32 s99, 0x20000")
        a("s_lshl_b32 s100, s2, 2")
        a("s_add_u32 s100, s100, s45")
        a("s_mul_i32 s100, s100, 768")
        a("v_lshlrev_b32 v63, 2, v17")
        a("buffer_store_dword v60, v63, s[96:99], s100 offen")
        a("buffer_store_dword v61, v63, s[96:99], s100 offen offset:256")
        a("buffer_store_dword v62, v63, s[96:99], s100 offen offset:512")
    assert nu == NS
    assert N_MODE < B_MODE
    ST.stamp(5)
    ST.cstamp(9)
    if ST.on:
        a("s_getreg_b32 s76, hwreg(HW_REG_XCC_ID)")
        a("s_add_u32 s76, s76, 1000")
    a("s_cmp_eq_u32 s61, 1")
    a(f"s_cselect_b32 s48, 0, {EX_BYTES}")
    a("s_add_u32 s62, s57, s48")
    a("s_lshl_b32 s59, s47, 5")
    a("s_add_u32 s59, s59, s58")
    a("s_lshl_b32 s48, s45, 3")
    a("s_add_u32 s59, s59, s48")
    a("v_and_b32 v50, 1, v17")
    a("v_lshlrev_b32 v50, 2, v50")
    a("s_lshl_b32 s54, s45, 12")
    tail_setup()
    a("s_cmp_eq_u32 s61, 1")
    a(f"s_cselect_b32 s48, 0, {2 * EX_BYTES}")
    a("s_add_u32 s56, s56, s48")
    a(f"s_add_u32 s57, s56, {2 * RBOX}")
    a.label("L_APOLL")
    a("s_sleep %d" % opt.get("asleep", 1))
    a("buffer_load_dword v44, v50, s[28:31], s59 offen offset:512 sc1")
    a("s_sub_u32 s63, s63, 1")
    a("s_waitcnt vmcnt(0)")
    a("s_cmp_eq_u32 s63, 0")
    a("s_cbranch_scc1 L_AGOT")
    a("v_cmp_ne_u32 vcc, 1, v44")
    a("s_cmp_eq_u64 vcc, 0")
    a("s_cbranch_scc0 L_APOLL")
    a.label("L_AGOT")
    a("s_mov_b32 m0, s54")
    a(f"s_mov_b32 s63, {SPIN_LIMIT}")
    for q in range(4):
        a(f"buffer_load_dwordx4 v49, s[28:31], s62 offen offset:{q*1024} sc1 lds")
    a("s_waitcnt vmcnt(0)")
    a("s_barrier")
    a("s_barrier")
    ST.stamp(14)
    a("s_branch L_POLL")
    a.label("L_CODE_END")
    return NV


def insert_pads(a, spacing, first):
    import subprocess, re, tempfile
    is_ins = lambda ln: ln.startswith("    ") and not ln.strip().startswith(";")

    def addresses():
        defined = {ln[:-1] for ln in a.lines if ln.endswith(":")}
        extra = "".join(f"L_PAD{j}:\n" for j in range(1, 200) if f"L_PAD{j}" not in defined)
        src = '.amdgcn_target "amdgcn-amd-amdhsa--gfx950"\n.text\n' + a.text() + extra
        with tempfile.TemporaryDirectory() as d:
            open(d + "/t.s", "w").write(src)
            subprocess.run(["clang", "-x", "assembler", "-target", "amdgcn-amd-amdhsa", "-mcpu=gfx950", "-c", d + "/t.s", "-o", d + "/t.o"], check=True)
            dis = subprocess.run(["llvm-objdump", "-d", "--mcpu=gfx950", d + "/t.o"], capture_output=True, text=True).stdout
        return [int(m.group(1), 16) for m in re.finditer(r"// ([0-9A-F]{12}):", dis)]

    addrs = addresses()
    idx = [i for i, ln in enumerate(a.lines) if is_ins(ln)]
    assert len(addrs) == len(idx), (len(addrs), len(idx))
    nopad = set()
    off_ = False
    for i_, ln in enumerate(a.lines):
        t_ = ln.strip()
        if off_:
            nopad.add(i_)
        if (t_.startswith("s_mov_b64 exec") and not t_.endswith("-1")) or "saveexec" in t_ or "exec_lo" in t_ or "exec_hi" in t_:
            off_ = True
        if t_ == "s_mov_b64 exec, -1" or t_ == "s_endpgm":
            off_ = False
    pos = []
    k = 0
    n = 0
    while True:
        target = first + k * spacing
        while n < len(addrs) and addrs[n] + 4 * k < target:
            n += 1
        if n >= len(addrs) - 4:
            break
        while idx[n] in nopad:
            n += 1
        pos.append(idx[n]); n += 1; k += 1
    NP = len(pos)
    assert NP >= 8, NP
    for k in range(NP, 0, -1):
        nxt = f"L_PAD{k + 8}" if k + 8 <= NP else ("L_PADRETC" if k % 2 == 1 else "L_PADRETL")
        a.lines[pos[k - 1]:pos[k - 1]] = [f"L_PAD{k}:", f"    s_cbranch_execz {nxt}"]
    print("pads:", NP, file=sys.stderr)


def main():
    opt = {}
    for arg in sys.argv[2:]:
        k, v = arg.split("=")
        opt[k] = int(v)
    a = Asm()
    nv = gen(a, opt)
    if opt.get("pads", 1):
        insert_pads(a, opt.get("pspace", 512), opt.get("pfirst", 2048))
    out = HEADER
    out += f"; @launch grid=(256,1,1) block=(512,1,1) lds={LDS_BYTES}\n"
    out += '.amdgcn_target "amdgcn-amd-amdhsa--gfx950"\n.text\n'
    out += a.text()
    out += '.section .rodata,"a"\n'
    out += kd(KNAME, nv, 102 if (opt.get("stamps") or opt.get("fixed") or opt.get("trace")) else 64)
    open(sys.argv[1], "w").write(out)


if __name__ == "__main__":
    main()
```

```python
import sys, struct
from gen2 import Asm, vr, srd, Stamps, kd, HEADER, KNAME, f2u

PASSES = [(0, 0), (1, 0), (0, 1), (1, 1)]
J = 16
W_BYTES = 31 * 512 * 512 * 2
OUT_BYTES = 2 * 485 * 512 * 2
RBOX = 16384
EX_BYTES = 256 * RBOX
FLAG_OFF = 3 * EX_BYTES
WS_BYTES = 3 * EX_BYTES + 16 * 1024
PLANE = 34 * 1024
XLDS = 2 * PLANE
RING_UNITS = 22
HALF = 11
RING_BASE = XLDS
MODE_LDS = XLDS + RING_UNITS * 4096
TL = MODE_LDS + 256
LDS_BYTES = MODE_LDS + 512
SPIN_LIMIT = 40000


def steps_list():
    st = []
    for cb, p in PASSES:
        for i in range(16 - p):
            st.append((cb, p, i, 2 * i + p))
    return st


def gen(a, opt):
    RX = 32
    for k_, v_ in dict(nA=6, xper=1, x1=1, av1=13, xps=4, per0=6).items():
        opt.setdefault(k_, v_)
    loader_ctx = [False]
    ST = Stamps(a, opt.get("stamps", 0))
    if "probe" in opt:
        class P:
            on = False
            def init(self): pass
            def cstamp(self, i): pass
            def dump(self, *x): pass
            def stamp(self, i):
                if i == opt["probe"] and not loader_ctx[0]:
                    a("s_memrealtime s[64:65]")
        ST = P()
        opt["fixed"] = 3000
    V_ACC = 16
    V_W = 80
    V_X = 92
    V_XA = V_X + 4 * RX
    V_WA = V_XA + 8
    V_PA = V_WA + 2
    V_FA = V_WA + 3
    V_RA = V_WA + 4
    NV = V_WA + 5
    st = steps_list()
    NS = len(st)
    N0 = opt.get("n0", 4)
    LA = opt.get("la", 20)
    HS = opt.get("hs", 4)
    FS = opt.get("fs", 1)
    CBSW = opt.get("cbswap", 2)

    a.raw(f".globl {KNAME}")
    a.raw(".p2align 12")
    a.raw(".p2align 8")
    a.raw(f".type {KNAME},@function")
    a.label(KNAME)
    a("s_cmp_ge_u32 s2, 256")
    a("s_cbranch_scc1 L_END0")
    ST.init()
    ST.stamp(0)
    if opt.get("fixed"):
        a("s_memrealtime s[64:65]")
    a("s_load_dwordx8 s[4:11], s[0:1], 0")
    a("s_load_dwordx8 s[12:19], s[0:1], 32")
    a("v_lshrrev_b32 v16, 6, v0")
    a("v_and_b32 v17, 63, v0")
    MAP = opt.get("map", 1)
    if MAP == 1:
        a("s_and_b32 s42, s2, 3")
        a("v_readfirstlane_b32 s40, v16")
        a("s_lshl_b32 s42, s42, 1")
        a("s_lshr_b32 s48, s2, 7")
        a("s_add_u32 s42, s42, s48")
        a("s_bfe_u32 s47, s2, 0x40003")
        a("s_bfe_u32 s43, s2, 0x10002")
        a("s_and_b32 s41, s47, 7")
        a("s_lshr_b32 s44, s47, 3")
    elif MAP == 0:
        a("s_and_b32 s42, s2, 7")
        a("v_readfirstlane_b32 s40, v16")
        a("s_bfe_u32 s47, s2, 0x40003")
        a("s_lshr_b32 s43, s2, 7")
        a("s_and_b32 s41, s47, 7")
        a("s_lshr_b32 s44, s47, 3")
    else:
        a("s_and_b32 s47, s2, 15")
        a("v_readfirstlane_b32 s40, v16")
        a("s_bfe_u32 s42, s2, 0x30004")
        a("s_lshr_b32 s43, s2, 7")
        a("s_and_b32 s41, s47, 7")
        a("s_lshr_b32 s44, s47, 3")
    a("s_and_b32 s45, s40, 3")
    a("s_lshl_b32 s46, s43, 3")
    a("s_add_u32 s46, s46, s42")
    a("s_mul_i32 s52, s43, 1024000")
    a("s_lshl_b32 s48, s44, 19")
    a("s_add_u32 s52, s52, s48")
    a("s_lshl_b32 s48, s41, 7")
    a("s_add_u32 s52, s52, s48")
    a("s_and_b32 s48, s41, 1")
    a("s_lshl_b32 s48, s48, 14")
    a("s_sub_u32 s52, s52, s48")
    a("s_lshl_b32 s48, s45, 15")
    a("s_add_u32 s60, s52, s48")
    a("s_lshl_b32 s61, s45, 11")
    a("s_and_b32 s48, s42, %d" % (1 if opt.get("xswap", 1) else 0))
    a("s_lshl_b32 s49, s48, 18")
    a("s_add_u32 s50, s60, s49")
    a("s_xor_b32 s49, s49, 0x40000")
    a("s_add_u32 s60, s60, s49")
    a("s_lshl_b32 s49, s48, 14")
    a("s_add_u32 s51, s61, s49")
    a("s_xor_b32 s49, s49, 0x4000")
    a("s_add_u32 s61, s61, s49")
    a("v_lshrrev_b32 v18, 4, v17")
    a("v_lshlrev_b32 v18, 12, v18")
    a("v_bfe_u32 v19, v17, 3, 1")
    a("v_lshl_add_u32 v18, v19, 11, v18")
    a("v_and_b32 v19, 7, v17")
    a("v_lshl_add_u32 v22, v19, 4, v18")
    a("s_lshl_b32 s48, s45, 5")
    a("v_xor_b32 v20, s48, v22")
    a("v_xor_b32 v21, 0x800, v20")
    a("s_add_u32 s48, s43, 1")
    a("s_mul_i32 s22, s48, 1024000")
    a("s_mov_b32 s23, 0x20000")
    a("s_cmp_ge_u32 s40, 4")
    a("s_cbranch_scc0 L_COMPUTE")

    XB = {"B": (60, 61)}

    def x_piece(p, i, e):
        if i < 4:
            ss, sl = (50, 51) if i < 2 else XB["B"]
            a(f"s_add_u32 m0, s{sl}, {p*PLANE + (i & 1)*8192 + e*1024}")
            a(f"s_add_u32 s48, s{ss}, {p*1024 + (i & 1)*131072 + e*16384}")
            if (i & 1) == 0 and e == 0:
                a("s_max_i32 s48, s48, 0")
            a(f"buffer_load_dwordx4 v{20 + (i & 1)}, s[20:23], s48 offen lds")
        else:
            a(f"s_add_u32 m0, s53, {p*PLANE}")
            a(f"s_add_u32 s48, s52, {p*1024}")
            a("buffer_load_dwordx4 v22, s[20:23], s48 offen lds")

    def gb_loads():
        a("s_lshl_b32 s48, s42, 7")
        a("s_lshl_b32 s49, s47, 3")
        a("s_add_u32 s48, s48, s49")
        a("s_load_dwordx2 s[8:9], s[8:9], s48")
        a("s_load_dwordx2 s[10:11], s[10:11], s48")
        a("s_load_dwordx2 s[12:13], s[12:13], s48")

    def other_srds():
        srd(a, 28, 18, 19, WS_BYTES)
        srd(a, 36, 14, 15, OUT_BYTES)

    def flag_area(dst):
        a(f"s_lshl_b32 s{dst}, s46, 10")
        a(f"s_add_u32 s{dst}, s{dst}, {FLAG_OFF}")

    def own_box(dst):
        a(f"s_lshl_b32 s{dst}, s46, 4")
        a(f"s_add_u32 s{dst}, s{dst}, s47")
        a(f"s_lshl_b32 s{dst}, s{dst}, 14")

    c1 = -2.0 * 1.4426950408889634 * 0.7978845608028654
    c2 = c1 * 0.044715

    def tail_setup():
        a("s_lshl_b32 s56, s46, 4")
        a("s_lshr_b32 s49, s40, 2")
        a("s_lshl_b32 s49, s49, 3")
        a("s_add_u32 s56, s56, s49")
        a("s_bfe_u32 s49, s40, 0x10001")
        a("s_add_u32 s56, s56, s49")
        a("s_lshl_b32 s56, s56, 14")
        a("s_lshl_b32 s49, s47, 10")
        a("s_add_u32 s56, s56, s49")
        flag_area(60)
        a("s_lshr_b32 s49, s47, 2")
        a("s_lshl_b32 s49, s49, 6")
        a("s_add_u32 s60, s60, s49")
        a("s_lshr_b32 s49, s40, 1")
        a("s_lshl_b32 s49, s49, 4")
        a("s_add_u32 s60, s60, s49")
        a("v_and_b32 v3, 7, v0")
        a("v_lshlrev_b32 v24, 5, v3")
        a("v_and_b32 v3, 3, v0")
        a("v_lshlrev_b32 v3, 2, v3")
        a("v_bfe_u32 v15, v0, 5, 1")
        a("v_and_b32 v1, 31, v0")
        a("v_lshlrev_b32 v1, 4, v1")
        a("v_lshl_add_u32 v1, v15, 16, v1")
        a("s_and_b32 s49, s40, 1")
        a("s_lshl_b32 s49, s49, 9")
        a("v_add_u32 v1, s49, v1")
        a("v_and_b32 v2, 15, v0")
        a("v_lshl_add_u32 v2, v2, 4, v15")
        a("v_bfe_u32 v15, v0, 4, 1")
        a("v_lshl_add_u32 v2, v15, 1, v2")
        a("s_lshr_b32 s49, s40, 2")
        a("s_lshl_b32 s49, s49, 8")
        a("s_xor_b32 s48, s45, 2")
        a("s_lshl_b32 s48, s48, 2")
        a("s_add_u32 s49, s49, s48")
        a("v_add_u32 v2, s49, v2")
        a("s_movk_i32 s49, 485")
        a("v_cmp_gt_u32 s[24:25], s49, v2")
        a("s_mul_i32 s49, s43, 485")
        a("v_add_u32 v2, s49, v2")
        a("v_lshlrev_b32 v2, 10, v2")
        a("s_lshl_b32 s48, s42, 7")
        a("s_lshl_b32 s49, s47, 3")
        a("s_add_u32 s48, s48, s49")
        a("v_add_u32 v2, s48, v2")
        a("v_lshrrev_b32 v4, 3, v0")
        a("v_lshlrev_b32 v4, 2, v4")
        a(f"v_add_u32 v4, {TL}, v4")
        a("v_bfe_u32 v15, v0, 3, 3")
        a("v_lshl_add_u32 v5, v15, 2, v24")
        a(f"v_add_u32 v5, {TL}, v5")
        a(f"v_mov_b32 v12, {f2u(c1):#x}")
        a(f"v_mov_b32 v13, {f2u(c1):#x}")
        a(f"s_mov_b32 s20, {f2u(c2):#x}")
        a(f"s_mov_b32 s21, {f2u(c2):#x}")
        a("s_mov_b32 s22, 1.0")
        a("s_mov_b32 s23, 1.0")
        a(f"s_mov_b32 s26, {f2u(1.0/485.0):#x}")
        a("s_mov_b32 s27, 0xffff0000")
        a(f"s_mov_b32 s63, {SPIN_LIMIT}")
        a("s_waitcnt lgkmcnt(0)")
        a("s_lshl_b32 s4, s8, 16")
        a("s_and_b32 s5, s8, 0xffff0000")
        a("s_lshl_b32 s6, s9, 16")
        a("s_and_b32 s7, s9, 0xffff0000")
        a("s_mov_b32 vcc_lo, 0")
        a("s_mov_b32 vcc_hi, -1")
        a("v_mov_b32 v11, s10")
        a("v_mov_b32 v24, s11")
        a("v_mov_b32 v14, s12")
        a("v_mov_b32 v25, s13")
        a("v_cndmask_b32 v11, v11, v24, vcc")
        a("v_cndmask_b32 v14, v14, v25, vcc")
        a("s_mov_b32 vcc_lo, 0xffff0000")
        a("s_mov_b32 vcc_hi, 0xffff0000")
        a("v_lshlrev_b32 v24, 16, v11")
        a("v_lshlrev_b32 v25, 16, v14")
        a("v_and_b32 v11, 0xffff0000, v11")
        a("v_and_b32 v14, 0xffff0000, v14")
        a("v_cndmask_b32 v11, v24, v11, vcc")
        a("v_cndmask_b32 v14, v25, v14, vcc")

    loader_ctx[0] = True
    if opt.get("cpf", 1):
        a("s_getpc_b64 s[56:57]")
        a.label("L_PC")
        a("s_lshr_b32 s48, s2, 3")
        a("s_lshl_b32 s48, s48, 2")
        a("s_add_u32 s48, s48, s45")
        a("s_lshl_b32 s48, s48, 8")
        a("v_lshl_add_u32 v30, v17, 7, s48")
        a("v_min_u32 v30, L_CODE_END-L_PC-4, v30")
        a("s_mov_b64 exec, 3")
        a("global_load_dword v31, v30, s[56:57]")
        a("s_mov_b64 exec, -1")
    a("s_and_b32 s48, s45, 1")
    a("s_add_u32 s48, s48, 32")
    a("s_lshl_b32 s53, s48, 10")
    a("s_lshl_b32 s48, s48, 14")
    a("s_add_u32 s52, s52, s48")
    a("v_lshrrev_b32 v26, 3, v17")
    a("s_lshl_b32 s48, s45, 3")
    a("v_add_u32 v26, s48, v26")
    a("v_lshlrev_b32 v26, 10, v26")
    a("v_bfe_u32 v27, v17, 4, 1")
    a("s_and_b32 s48, s45, 1")
    a("s_lshl_b32 s48, s48, 1")
    a("v_or_b32 v27, s48, v27")
    a("v_lshlrev_b32 v27, 1, v27")
    a("v_xor_b32 v27, v27, v19")
    a("v_lshl_add_u32 v26, v27, 4, v26")
    a("s_lshl_b32 s48, s42, 7")
    a("s_lshl_b32 s49, s41, 16")
    a("s_add_u32 s48, s48, s49")
    if CBSW:
        a(f"s_lshl_b32 s49, s{44 if CBSW == 1 else 43}, 15")
        a("s_add_u32 s48, s48, s49")
    a("v_add_u32 v26, s48, v26")
    a("v_xor_b32 v27, 0x8000, v26")
    a("s_lshl_b32 s54, s45, 10")
    a(f"s_add_u32 s54, s54, {RING_BASE}")
    a("s_mov_b32 s26, %d" % W_BYTES)
    a("s_mov_b32 s27, 0x20000")
    a("s_waitcnt lgkmcnt(0)")
    ST.stamp(1)
    a("s_mov_b32 s24, s6")
    a("s_and_b32 s25, s7, 0xffff")
    a("s_mov_b32 s20, s4")
    a("s_and_b32 s21, s5, 0xffff")
    vq = []
    ghost = []

    def w_unit(u):
        cb, p, i, tap = st[u]
        a(f"s_add_u32 m0, s54, {(u % RING_UNITS) * 4096}")
        a(f"s_mov_b32 s48, {tap * 524288}")
        if opt.get("nodma") and u >= 10:
            vq.append(("w", u)); vq.append("ghost"); vq.pop(); ghost.append(len(vq) - 1)
            return
        a(f"buffer_load_dwordx4 v{26 + cb}, s[24:27], s48 offen lds")
        vq.append(("w", u))

    NW0 = max(2, HS)
    for u in range(NW0):
        w_unit(u)
    if HS:
        lx0 = [(i, 0) for i in range(4)] + [(4, 0)]
        cx0 = [(i, 1) for i in range(4)]
    else:
        lx0 = [(2, 0), (2, 1), (3, 0), (3, 1), (4, 0)]
        cx0 = [(0, 0), (0, 1), (1, 0), (1, 1)]
    for i, e in lx0:
        x_piece(0, i, e); vq.append("x0")
    for u in range(NW0, N0):
        w_unit(u)
    a("s_branch L_LOADLOOP")
    a.label("L_END0")
    a("s_endpgm")

    loader_ctx[0] = False
    a.label("L_COMPUTE")
    a("v_and_b32 v23, 15, v17")
    a("v_lshrrev_b32 v16, 4, v17")
    for d in range(2):
        a(f"v_add_u32 v18, {d}, v23")
        a("v_and_b32 v18, 7, v18")
        a("v_lshlrev_b32 v18, 1, v18")
        a("v_xor_b32 v18, v16, v18")
        a("v_lshlrev_b32 v18, 4, v18")
        a(f"v_lshl_add_u32 v{V_XA + 4*d}, v23, 11, v18")
        if CBSW:
            a(f"s_lshl_b32 s48, s{44 if CBSW == 1 else 43}, 6")
            a(f"v_xor_b32 v{V_XA + 4*d}, s48, v{V_XA + 4*d}")
    a("s_waitcnt lgkmcnt(0)")
    ST.stamp(1)
    a("s_mov_b32 s20, s4")
    a("s_and_b32 s21, s5, 0xffff")
    for i, e in cx0:
        x_piece(0, i, e)
    gb_loads()
    other_srds()
    for d in range(2):
        for z in range(1, 4):
            a(f"v_xor_b32 v{V_XA + 4*d + z}, {z << 6}, v{V_XA + 4*d}")
    a("v_lshrrev_b32 v18, 2, v23")
    a("v_lshl_add_u32 v18, v16, 3, v18")
    a("v_lshlrev_b32 v18, 7, v18")
    a("v_lshrrev_b32 v19, 3, v23")
    a("v_and_b32 v26, 1, v16")
    a("v_lshl_or_b32 v19, v26, 1, v19")
    a("v_xor_b32 v19, s40, v19")
    a("v_lshl_add_u32 v18, v19, 5, v18")
    a("v_and_b32 v19, 3, v23")
    a("v_lshl_add_u32 v18, v19, 3, v18")
    a(f"v_add_u32 v{V_WA}, {RING_BASE}, v18")
    a(f"v_add_u32 v{V_WA+1}, {RING_BASE + HALF*4096}, v18")
    a("s_lshl_b32 s48, s40, 2")
    a("v_add_u32 v6, s48, v16")
    a("v_lshlrev_b32 v6, 10, v6")
    a("v_lshl_add_u32 v6, v23, 4, v6")
    own_box(55)
    a("s_lshl_b32 s58, s46, 18")
    a("s_xor_b32 s48, s47, 1")
    a("s_lshl_b32 s48, s48, 14")
    a("s_lshl_b32 s49, s40, 12")
    a("s_add_u32 s48, s48, s49")
    a("s_and_b32 s49, s41, 1")
    a("s_lshl_b32 s59, s49, 4")
    a("s_sub_u32 s48, s48, s59")
    a(f"v_lshl_add_u32 v{V_PA}, v17, 4, s48")
    a("s_cmp_eq_u32 s44, 1")
    a(f"s_cselect_b32 s59, {(-8 * RBOX + 256) & 0xffffffff:#x}, 0")
    a("s_cselect_b32 s57, 0, 0x40000000")
    a("s_add_u32 s59, s59, s57")
    a("s_cmp_eq_u32 s49, 1")
    a("s_cselect_b32 s59, s59, 0")
    a("v_cmp_eq_u32 vcc, 0, v23")
    a("v_mov_b32 v18, s59")
    a("s_nop 0")
    a("v_cndmask_b32 v18, 0, v18, vcc")
    a(f"v_add_u32 v{V_PA}, v{V_PA}, v18")
    a("s_xor_b32 s48, s47, 1")
    a("s_lshl_b32 s48, s48, 5")
    a("s_lshl_b32 s57, s40, 3")
    a("s_add_u32 s48, s48, s57")
    a("s_add_u32 s48, s48, 512")
    a("s_lshl_b32 s49, s49, 8")
    a("s_or_b32 s49, s49, 4")
    a("v_and_b32 v18, 1, v17")
    a("v_mul_u32_u24 v18, s49, v18")
    a(f"v_xor_b32 v{V_FA}, s48, v18")
    flag_area(59)
    a("s_lshl_b32 s62, s40, 6")
    a("s_add_u32 s62, s62, s59")
    a("s_lshl_b32 s48, s44, 5")
    a("s_add_u32 s62, s62, s48")
    a("s_and_b32 s48, s41, 1")
    a("s_lshl_b32 s48, s48, 4")
    a("s_add_u32 s62, s62, s48")
    a("s_lshr_b32 s48, s41, 1")
    a("s_lshl_b32 s48, s48, 2")
    a("s_add_u32 s62, s62, s48")
    a("s_lshl_b32 s48, s40, 12")
    a(f"v_lshl_add_u32 v{V_RA}, v17, 4, s48")
    a("v_mov_b32 v8, 1")
    a("v_mov_b32 v9, 0")
    a(f"v_mov_b32 v7, {MODE_LDS}")
    def pad_walk(first, ret):
        if not opt.get("pads", 1):
            return
        a("s_mov_b64 exec, 0")
        for w in range(4):
            a(f"s_cmp_eq_u32 s45, {w}")
            a(f"s_cbranch_scc1 L_PAD{2 * w + first}")
        a.label(ret)
        a("s_mov_b64 exec, -1")

    pad_walk(1, "L_PADRETC")
    tail_setup()
    a("s_waitcnt vmcnt(0)")
    ST.stamp(2)
    a("s_barrier")
    ST.stamp(3)

    frags = []
    pass_off = {}
    for cb, p in PASSES:
        pass_off[(cb, p)] = len(frags)
        for f in range(16 - p + J - 1):
            frags.append((cb, p, f))
    AV1 = opt.get("av1", 11)
    B_MODE = opt.get("bmode", 20)
    LP = NS - 15
    FU = 4

    def x_avail(F):
        cb, p, f = frags[F]
        if p == 1:
            return AV1
        if HS and not (F < 31 and 8 <= f <= 15):
            return 1
        return 0

    blocks = []
    for i in range(HS):
        blocks.append((i, [j for j in range(J) if 8 <= i + j <= 15]))
    for i in range(HS):
        blocks.append((i, [j for j in range(J) if not 8 <= i + j <= 15]))
    for t in range(HS, LP):
        blocks.append((t, list(range(J))))
    HA = len(blocks)
    for t in range(LP, NS):
        blocks.append((t, list(range(8))))
    HB = len(blocks)
    for t in range(LP, NS - FU):
        blocks.append((t, list(range(8, 16))))
    NB = len(blocks)
    assert HS == 4
    bar_at = {opt.get("hsbar", 3): NW0 - 1, 2 * HS - 1: 5}
    for bi, (t, js) in enumerate(blocks):
        if 2 * HS <= bi < HA and t % 2 == 1:
            bar_at[bi] = t + 2
    bar_at[HA - 2] = LP + 3
    bar_at[HA + 2] = LP + 8
    bar_at[HA + 7] = NS - 1
    bar_list = [NW0 - 1] + [bar_at[k] for k in sorted(bar_at)]
    NWB = len(bar_list)

    def w_avail(u):
        return min(n for n, m in enumerate(bar_list) if m >= u)

    xorder = list(range(8, 16)) + list(range(8)) + list(range(16, len(frags)))
    S = dict(lds_q=[], waited=-1, bars=0, nx=0, nw=0, init=set())
    offL = pass_off[PASSES[-1]]
    slot = lambda f: V_X + 4 * ((offL + f) % RX)
    PA = [slot(k) for k in range(4)]
    RAW = [slot(4 + k) for k in range(4)]
    WF = [slot(30), slot(31), slot(8), slot(9)]
    PB = [slot(10 + k) for k in range(4)]

    def wreg(key):
        return WF[key - NB] if key >= NB else V_W + 4 * (key % 3)

    def wunit(key):
        return NS - FU + (key - NB) if key >= NB else blocks[key][0]

    def issue_x(F):
        cb, p, f = frags[F]
        d = f >> 4
        z = (f & 1) * 2 + cb
        r = V_X + 4 * (F % RX)
        assert S["bars"] >= x_avail(F)
        a(f"ds_read_b128 {vr(r,4)}, v{V_XA + 4*d + z} offset:{p*PLANE + (f>>1)*256}")
        S["lds_q"].append(("x", F))

    def issue_w(key, h):
        u = wunit(key)
        uu = u % RING_UNITS
        off = (uu % HALF) * 4096 + h * 512
        assert S["bars"] >= w_avail(u), (u, S["bars"])
        a(f"ds_read_b64_tr_b16 {vr(wreg(key) + 2*h,2)}, v{V_WA + uu // HALF} offset:{off}")
        S["lds_q"].append(("w", key, h))

    def wait_for(tags):
        q = S["lds_q"]
        idx = max(q.index(tg) for tg in tags)
        if idx <= S["waited"]:
            return 0
        n = len(q) - 1 - idx
        if n > 15:
            n = 15
            idx = len(q) - 1 - n
        a(f"s_waitcnt lgkmcnt({n})")
        S["waited"] = idx
        return 1

    def mfma(j, key, F):
        acc = V_ACC + 4 * j
        c = vr(acc, 4) if j in S["init"] else "0"
        S["init"].add(j)
        a(f"v_mfma_f32_16x16x32_bf16 {vr(acc,4)}, {vr(wreg(key),4)}, {vr(V_X + 4*(F % RX),4)}, {c}")

    slow_sites = []

    def store2(ins):
        k = len(slow_sites)
        slow_sites.append(ins)
        a(f"s_cbranch_scc0 L_SL{k}")
        a(ins)
        a.label(f"L_SB{k}")

    def emit_raw(op):
        if isinstance(op, tuple):
            if op[0] == "st":
                store2(op[1])
            elif op[0] == "wait":
                wait_for(op[1])
        else:
            a(op)

    issue_w(0, 0); issue_w(0, 1); S["nw"] = 1
    for k in range(8):
        issue_x(xorder[k]); S["nx"] += 1

    XPS = opt.get("xps", 3)
    mode_blk = next(bi for bi, (t, js) in enumerate(blocks) if bi >= 2 * HS and t == 2 * B_MODE + 1)
    FA = opt.get("fa", 4)
    rawq = []
    for bi, (t, js) in enumerate(blocks):
        cb, p, i, tap = st[t]
        off = pass_off[(cb, p)]
        fmin = off + (i if HS <= bi < HA else 0)
        if 2 * HS <= bi < HA and t % 8 == 4:
            ST.stamp(4 + t // 8)
        side = []
        nb = S["bars"]
        if bi in bar_at:
            side.append(("bar",)); nb += 1
        short_next = bi + 1 < NB and len(blocks[bi + 1][1]) == 8
        upto = bi + (2 if short_next else 1)
        if bi >= NB - 3:
            upto = min(NB + FU - 1, S["nw"] + 1)
        tmpw = S["nw"]
        while tmpw <= upto and tmpw < NB + FU and nb >= w_avail(wunit(tmpw)):
            side += [("w", tmpw, 0), ("w", tmpw, 1)]; tmpw += 1
        S["nw"] = tmpw
        assert tmpw > bi + 1 or tmpw == NB + FU, (bi, tmpw)
        tmp = S["nx"]
        lim = (len(js) - len(side) - 1) if len(js) == 8 else XPS
        cntx = 0
        while cntx < lim and tmp < len(frags) and xorder[tmp] - fmin < RX and nb >= x_avail(xorder[tmp]):
            side.append(("x", xorder[tmp])); tmp += 1; cntx += 1
        if bi == mode_blk:
            assert S["bars"] >= B_MODE
            side.append(("mode",))
        if bi == mode_blk + 2:
            wait_for([("mode",)])
            rawq += ["v_readfirstlane_b32 s61, v10", "s_nop 0", "s_cmp_eq_u32 s61, 1",
                     f"s_cselect_b32 s48, 0, {EX_BYTES}", "s_add_u32 s58, s58, s48", "s_lshl_b32 s48, s48, 1",
                     "s_add_u32 s55, s55, s48", "s_add_u32 s56, s56, s48", f"s_add_u32 s57, s56, {2 * RBOX}",
                     "s_cmp_eq_u32 s61, 1"]
        if bi == HB:
            a.comment("LATE_BEGIN")
            rawq += [None] * 4
            for k in range(4):
                A = V_ACC + 8 * k
                rawq += [f"v_cvt_pk_bf16_f32 v{PA[k] + r}, v{A + 2*r}, v{A + 2*r + 1}" for r in range(4)]
                rawq.append(("st", f"buffer_store_dwordx4 {vr(PA[k], 4)}, v{V_PA}, s[28:31], s58 offen offset:{k*1024}"))
        if bi == HB + FA:
            assert not rawq
            rawq += ["s_waitcnt vmcnt(0)", ("st", f"buffer_store_dword v8, v{V_FA}, s[28:31], s59 offen")]
        fine = bi <= 2 * HS
        for k, j in enumerate(js):
            F = off + i + j
            if fine:
                wait_for([("w", bi, 0), ("w", bi, 1), ("x", F)])
            elif k == 0:
                wait_for([("w", bi, 0), ("w", bi, 1)] + [("x", off + i + jj) for jj in js[:len(js) // 2]])
            elif k == len(js) // 2:
                wait_for([("x", off + i + jj) for jj in js])
            mfma(j, bi, F)
            room = 2
            if side:
                room -= 1
                s = side.pop(0)
                if s[0] == "bar":
                    a("s_barrier"); S["bars"] += 1
                elif s[0] == "w":
                    issue_w(s[1], s[2])
                elif s[0] == "x":
                    issue_x(s[1]); S["nx"] += 1
                elif s[0] == "mode":
                    a("ds_read_b32 v10, v7")
                    S["lds_q"].append(("mode",))
            while rawq and room:
                op = rawq.pop(0); room -= 1
                if op is not None:
                    emit_raw(op)
        assert not side, (bi, side)
    assert S["nx"] == len(frags) and S["nw"] == NB + FU and not rawq
    assert S["bars"] == NWB - 1, (S["bars"], NWB)

    i0_ = st[NS - FU][2]
    wait_for([("w", NB + k, h) for k in range(FU) for h in range(2)] + [("x", len(frags) - 1)])
    seq = [(g_, k, j) for g_ in range(4) for k in range(FU) for j in (8 + 2 * g_, 9 + 2 * g_)]
    BX = opt.get("bx", 1)
    free = []
    pend = []
    cnt = 0
    U = lambda g_: V_ACC + 8 * g_
    for n_, (g_, k, j) in enumerate(seq):
        mfma(j, NB + k, offL + i0_ + k + j); cnt += 1
        if n_ == BX:
            a("s_barrier"); cnt += 1
            for q in range(4):
                a(f"ds_read_b128 {vr(RAW[q], 4)}, v{V_RA} offset:{q*1024}"); cnt += 1
                S["lds_q"].append(("r", q))
            free += [None] * opt.get('fdelay', 15)
            for q in range(4):
                free.append(("wait", [("r", q)]))
                for r in range(4):
                    free.append(f"v_lshlrev_b32 v{U(q) + 2*r}, 16, v{RAW[q] + r}")
                    free.append(f"v_and_b32 v{U(q) + 2*r + 1}, s27, v{RAW[q] + r}")
                free.append(("mark", q))
        if k == FU - 1 and j % 2 == 1:
            A = V_ACC + 4 * (j - 1)
            ops = [f"v_pk_add_f32 v[{U(g_) + 2*r}:{U(g_) + 2*r + 1}], v[{U(g_) + 2*r}:{U(g_) + 2*r + 1}], v[{A + 2*r}:{A + 2*r + 1}]" for r in range(4)]
            ops += [f"v_cvt_pk_bf16_f32 v{PB[g_] + r}, v{U(g_) + 2*r}, v{U(g_) + 2*r + 1}" for r in range(4)]
            ops.append(("st", f"buffer_store_dwordx4 {vr(PB[g_], 4)}, v6, s[28:31], s55 offen offset:{g_*256}"))
            pend += [(cnt + 9, g_, op) for op in ops]
        room = opt.get("froom", 3)
        while room:
            unp = {m[1] for m in free if isinstance(m, tuple) and m[0] == "mark"}
            if pend and pend[0][0] <= cnt and pend[0][1] not in unp and n_ > BX:
                emit_raw(pend.pop(0)[2]); cnt += 1
            elif free:
                op = free.pop(0)
                if isinstance(op, tuple) and op[0] == "mark":
                    continue
                if op is not None:
                    nl = len(a.lines); emit_raw(op); cnt += len(a.lines) - nl
            elif pend:
                a("s_nop 1"); cnt += 2
                break
            else:
                break
            room -= 1
    ST.stamp(12)
    for op in free:
        if op is not None and not (isinstance(op, tuple) and op[0] == "mark"):
            nl = len(a.lines); emit_raw(op); cnt += len(a.lines) - nl
    while pend:
        if pend[0][0] > cnt:
            a(f"s_nop {pend[0][0] - cnt - 1}"); cnt = pend[0][0]
        emit_raw(pend.pop(0)[2]); cnt += 1
    ST.stamp(13)
    a("s_barrier")
    a("s_waitcnt vmcnt(0)")
    store2("buffer_store_dword v8, v9, s[28:31], s62 offen")
    ST.stamp(14)
    D = 48
    a.label("L_POLL")
    a("buffer_load_dword v15, v3, s[28:31], s60 offen sc1")
    a("s_sub_u32 s63, s63, 1")
    a("s_waitcnt vmcnt(0)")
    a("v_cmp_ne_u32 vcc, 1, v15")
    a("s_cmp_eq_u64 vcc, 0")
    a("s_cbranch_scc0 L_POLLMORE")
    a.label("L_GOT")
    ST.stamp(15)
    for q in range(2):
        a(f"buffer_load_dwordx4 {vr(D+4*q,4)}, v1, s[28:31], s{56+q} offen sc1")
    for q in range(2):
        a(f"s_waitcnt vmcnt({1-q})")
        if q == 1:
            ST.stamp(10)
        T = 16 if q == 0 else 24
        for k in range(4):
            a(f"v_lshlrev_b32 v{T+2*k}, 16, v{D+4*q+k}")
            a(f"v_and_b32 v{T+2*k+1}, s27, v{D+4*q+k}")
        if q:
            for k in range(4):
                a(f"v_pk_add_f32 v[{16+2*k}:{17+2*k}], v[{16+2*k}:{17+2*k}], v[{24+2*k}:{25+2*k}]")
    a("s_nop 1")
    for r in range(4):
        a(f"v_permlane32_swap_b32 v{16+r}, v{20+r}")
    a("v_pk_add_f32 v[16:17], v[16:17], v[20:21]")
    a("v_pk_add_f32 v[18:19], v[18:19], v[22:23]")
    a("v_pk_add_f32 v[16:17], v[16:17], s[4:5]")
    a("v_pk_add_f32 v[18:19], v[18:19], s[6:7]")
    for r in range(4):
        a(f"v_cndmask_b32 v{20+r}, 0, v{16+r}, s[24:25]")
    a("v_pk_mul_f32 v[24:25], v[20:21], v[20:21]")
    a("v_pk_mul_f32 v[26:27], v[22:23], v[22:23]")
    a("v_permlane32_swap_b32 v20, v22")
    a("v_permlane32_swap_b32 v21, v23")
    a("v_permlane32_swap_b32 v24, v26")
    a("v_permlane32_swap_b32 v25, v27")
    a("v_add_f32 v20, v20, v22")
    a("v_add_f32 v21, v21, v23")
    a("v_add_f32 v24, v24, v26")
    a("v_add_f32 v25, v25, v27")
    a("s_nop 0")
    a("v_permlane16_swap_b32 v20, v21")
    a("v_permlane16_swap_b32 v24, v25")
    a("v_add_f32 v20, v20, v21")
    a("v_add_f32 v24, v24, v25")
    a("s_nop 0")
    a("v_add_f32_dpp v28, v20, v20 row_ror:8 row_mask:0xf bank_mask:0x3")
    a("v_add_f32_dpp v28, v24, v24 row_ror:8 row_mask:0xf bank_mask:0xc")

    def red8(r):
        for mod in ("row_half_mirror", "quad_perm:[1,0,3,2]", "quad_perm:[2,3,0,1]"):
            a("s_nop 1")
            a(f"v_add_f32_dpp v{r}, v{r}, v{r} {mod} row_mask:0xf bank_mask:0xf")

    red8(28)
    a("ds_write_b32 v4, v28")
    a("s_waitcnt lgkmcnt(0)")
    a("s_barrier")
    a("ds_read_b32 v28, v5")
    a("s_waitcnt lgkmcnt(0)")
    a("v_mul_f32 v28, s26, v28")
    red8(28)
    a("s_nop 1")
    a("v_mov_b32_dpp v29, v28 row_ror:8 row_mask:0xf bank_mask:0xf")
    a("v_fma_f32 v29, -v28, v28, v29")
    a("v_max_f32 v29, 0, v29")
    a(f"v_add_f32 v29, {f2u(1e-5):#x}, v29")
    a("v_rsq_f32 v29, v29")
    a("s_nop 0")
    a("v_mul_f32 v29, v11, v29")
    a("v_fma_f32 v28, -v28, v29, v14")
    for r in range(4):
        a(f"v_readlane_b32 s{48+r}, v29, {16*r}")
    for r in range(4):
        a(f"v_readlane_b32 s{52+r}, v28, {16*r}")
    a("v_pk_mul_f32 v[16:17], v[16:17], s[48:49]")
    a("v_pk_mul_f32 v[18:19], v[18:19], s[50:51]")
    a("v_pk_add_f32 v[16:17], v[16:17], s[52:53]")
    a("v_pk_add_f32 v[18:19], v[18:19], s[54:55]")
    a("v_pk_mul_f32 v[20:21], v[16:17], v[16:17]")
    a("v_pk_mul_f32 v[22:23], v[18:19], v[18:19]")
    a("v_pk_fma_f32 v[20:21], v[20:21], s[20:21], v[12:13]")
    a("v_pk_fma_f32 v[22:23], v[22:23], s[20:21], v[12:13]")
    a("v_pk_mul_f32 v[20:21], v[20:21], v[16:17]")
    a("v_pk_mul_f32 v[22:23], v[22:23], v[18:19]")
    for r in range(4):
        a(f"v_exp_f32 v{20+r}, v{20+r}")
    a("s_nop 0")
    a("v_pk_add_f32 v[20:21], v[20:21], s[22:23]")
    a("v_pk_add_f32 v[22:23], v[22:23], s[22:23]")
    for r in range(4):
        a(f"v_rcp_f32 v{20+r}, v{20+r}")
    a("s_nop 0")
    a("v_pk_mul_f32 v[16:17], v[16:17], v[20:21]")
    a("v_pk_mul_f32 v[18:19], v[18:19], v[22:23]")
    a("v_cvt_pk_bf16_f32 v20, v16, v17")
    a("v_cvt_pk_bf16_f32 v21, v18, v19")
    a("s_and_saveexec_b64 s[26:27], s[24:25]")
    a("s_cbranch_execz L_FIN")
    a("buffer_store_dwordx2 v[20:21], v2, s[36:39], 0 offen" + {0: "", 1: " nt", 2: " sc0"}[opt.get("oflag", 0)])
    a.label("L_FIN")
    if opt.get("probe") == 11:
        a("s_memrealtime s[64:65]")
    if opt.get("probe") == 17:
        a("s_waitcnt vmcnt(0)")
        a("s_memrealtime s[64:65]")
    if opt.get("fixed"):
        a("s_waitcnt vmcnt(0) lgkmcnt(0)")
        a.label("L_FIX")
        a("s_memrealtime s[66:67]")
        a("s_waitcnt lgkmcnt(0)")
        a("s_sub_u32 s66, s66, s64")
        a(f"s_cmp_lt_u32 s66, {opt['fixed']}")
        a("s_cbranch_scc1 L_FIX")
    if ST.on:
        a("s_mov_b64 exec, -1")
        ST.stamp(11)
        a("s_waitcnt vmcnt(0)")
        a("s_cmp_ge_u32 s40, 4")
        a("s_cbranch_scc0 L_ST2")
        ST.stamp(7)
        a.label("L_ST2")
        a("s_barrier")
        ST.dump(18, 40)
    a("s_endpgm")

    a.label("L_POLLMORE")
    a("s_cmp_eq_u32 s63, 0")
    a("s_cbranch_scc1 L_GOT")
    a("s_cmp_eq_u32 s61, 1")
    a("s_cbranch_scc1 L_POLL")
    a("s_sleep 8")
    a("s_branch L_POLL")
    for k, ins in enumerate(slow_sites):
        a.label(f"L_SL{k}")
        a(ins + " sc1")
        a(f"s_branch L_SB{k}")

    loader_ctx[0] = True
    a.label("L_LOADLOOP")
    a("s_mov_b32 s4, s60")
    a("s_mov_b32 s5, s61")
    XB["B"] = (4, 5)
    other_srds()
    flag_area(58)
    for r in range(40, 44):
        a(f"v_mov_b32 v{r}, 0")
    a("v_lshlrev_b32 v49, 4, v17")
    a("s_cmp_eq_u32 s47, 0")
    a("s_cselect_b32 s55, 2, 1")
    a("s_cmp_eq_u32 s40, 4")
    a("s_cselect_b32 s55, s55, 0")
    a("s_cmp_eq_u32 s55, 2")
    a("s_cbranch_scc0 L_NORESET")
    a("buffer_store_dwordx4 v[40:43], v49, s[28:31], s58 offen sc1")
    a.label("L_NORESET")
    reset_pos = len(vq)
    gb_loads()
    srd(a, 32, 16, 17, 256)
    own_box(62)
    a("s_lshl_b32 s60, s46, 4")
    a("v_lshlrev_b32 v42, 7, v17")
    a("s_lshl_b32 s57, s45, 12")
    a("s_add_u32 s57, s57, s62")
    a("s_getreg_b32 s48, hwreg(HW_REG_XCC_ID, 0, 4)")
    a("s_or_b32 s48, s48, 0x10")
    a("v_mov_b32 v41, s48")
    a("s_lshl_b32 s59, s47, 2")
    a("s_add_u32 s59, s59, s58")
    a("v_and_b32 v50, 15, v17")
    a("v_lshlrev_b32 v50, 2, v50")

    if opt.get("npf", 0):
        a("s_lshl_b32 s48, s42, 7")
        a("s_lshl_b32 s49, s41, 16")
        a("s_add_u32 s48, s48, s49")
        a("v_lshl_add_u32 v53, v17, 10, s48")
        a("s_lshl_b32 s6, s45, 2")
        a("s_lshl_b32 s48, s43, 1")
        a("s_add_u32 s6, s6, s48")
        a("s_add_u32 s6, s6, s44")
        a("s_lshl_b32 s6, s6, 20")
        a("s_add_u32 s6, s6, 0x80000")

    def lwait(tags):
        idx = max(k for k, tg in enumerate(vq) if tg in tags)
        n = len(vq) - 1 - idx
        assert n <= 63
        a(f"s_waitcnt vmcnt({n})")

    def one_lane(ins):
        a("s_mov_b64 exec, 1")
        a(ins)
        a("s_mov_b64 exec, -1")

    nu = N0
    pad_walk(2, "L_PADRETL")
    ST.stamp(2)
    lwait([("w", NW0 - 1)] + ([] if HS else ["x0"]))
    ST.stamp(3)
    a("s_barrier")
    ST.stamp(4)
    ST.cstamp(8)
    GAP = opt.get("gap", 4)
    opt.setdefault("per0", 4)
    N_RDY = opt.get("nrdy", 2)
    N_RL = opt.get("nrl", 5)
    N_XCC = N_RL + GAP
    N_CHK = N_XCC + GAP
    N_MODE = N_CHK + GAP
    N_TOUCH = opt.get("ntouch", 19)
    xq = [(i, e) for i in range(4) for e in range(2)] + [(4, 0)]
    X1 = opt.get("x1", 3)
    PER = opt.get("per", 3)
    PER2 = opt.get("per2", PER)
    pos = {}
    for n in range(NWB - 1):
        umax = min(NS - 1, 2 * n - 1 + RING_UNITS, 2 * n + 1 + LA)
        if HS and n < 2:
            umax = min(umax, RING_UNITS - 1)
        k = 0
        while nu <= umax and k < (opt.get("per0", 0) if (HS and n == 0) else (opt.get("perA", 2) if n <= opt.get("nA", 0) else PER)):
            w_unit(nu); nu += 1; k += 1
        assert nu > bar_list[n + 1], (n, nu)
        if n >= X1:
            for _ in range(opt.get("xper", 2)):
                if xq:
                    x_piece(1, *xq.pop(0)); vq.append("x1")
        if n == N_RDY and not opt.get("nohs"):
            a("s_cmp_eq_u32 s55, 2")
            a("s_cbranch_scc0 L_NORDY")
            a(f"s_waitcnt vmcnt({len(vq) - reset_pos})")
            one_lane("buffer_store_dword v41, v40, s[32:35], s60 offen sc1")
            a.label("L_NORDY")
        if n == N_RL and not opt.get("nohs"):
            a("s_cmp_eq_u32 s55, 0")
            a("s_cbranch_scc1 L_NORL")
            one_lane("buffer_load_dword v44, v40, s[32:35], s60 offen sc1")
            a.label("L_NORL")
            pos["rl"] = len(vq)
        if n == N_XCC and not opt.get("nohs"):
            a("s_cmp_eq_u32 s55, 0")
            a("s_cbranch_scc1 L_NOXCC")
            a(f"s_waitcnt vmcnt({len(vq) - pos['rl']})")
            a(f"s_mov_b32 s63, {SPIN_LIMIT}")
            a.label("L_RCHK")
            a("v_readfirstlane_b32 s48, v44")
            a("s_cmp_lg_u32 s48, 0")
            a("s_cbranch_scc1 L_ROK")
            a("s_sub_u32 s63, s63, 1")
            a("s_cmp_eq_u32 s63, 0")
            a("s_cbranch_scc1 L_ROK")
            a("s_sleep 4")
            one_lane("buffer_load_dword v44, v40, s[32:35], s60 offen sc1")
            a("s_waitcnt vmcnt(0)")
            a("s_branch L_RCHK")
            a.label("L_ROK")
            one_lane("buffer_store_dword v41, v40, s[28:31], s59 offen offset:256 sc1")
            a.label("L_NOXCC")
        if n == N_CHK and not opt.get("nohs"):
            a("s_cmp_eq_u32 s55, 0")
            a("s_cbranch_scc1 L_NOCHK")
            a("buffer_load_dword v44, v50, s[28:31], s58 offen offset:256 sc1")
            a.label("L_NOCHK")
            pos["chk"] = len(vq)
        if n == N_MODE and opt.get("nohs"):
            a("v_mov_b32 v45, 1")
            a(f"v_mov_b32 v46, {MODE_LDS}")
            a("ds_write_b32 v46, v45")
            a("s_waitcnt lgkmcnt(0)")
        if n == N_MODE and not opt.get("nohs"):
            a("s_cmp_eq_u32 s55, 0")
            a("s_cbranch_scc1 L_NOMODE")
            a(f"s_waitcnt vmcnt({len(vq) - pos['chk']})")
            a(f"s_mov_b32 s63, {SPIN_LIMIT}")
            a.label("L_HCHK")
            a("v_cmp_eq_u32 vcc, 0, v44")
            a("s_cmp_eq_u64 vcc, 0")
            a("s_cbranch_scc1 L_HOK")
            a("s_sub_u32 s63, s63, 1")
            a("s_cmp_eq_u32 s63, 0")
            a("s_cbranch_scc1 L_HOK")
            a("s_sleep 4")
            a("buffer_load_dword v44, v50, s[28:31], s58 offen offset:256 sc1")
            a("s_waitcnt vmcnt(0)")
            a("s_branch L_HCHK")
            a.label("L_HOK")
            a("v_cmp_ne_u32 vcc, v41, v44")
            a("s_cmp_eq_u64 vcc, 0")
            a("s_cselect_b32 s61, 1, 0")
            if opt.get("forceslow"):
                a("s_mov_b32 s61, 0")
            a("v_mov_b32 v45, s61")
            a(f"v_mov_b32 v46, {MODE_LDS}")
            a("ds_write_b32 v46, v45")
            a("s_waitcnt lgkmcnt(0)")
            a.label("L_NOMODE")
        if n == N_MODE + 1:
            a(f"v_mov_b32 v46, {MODE_LDS}")
            a("ds_read_b32 v45, v46")
            a("s_waitcnt lgkmcnt(0)")
            a("v_readfirstlane_b32 s61, v45")
            a("s_and_b32 s49, s61, s55")
            a("s_cmp_eq_u32 s49, 1")
            a("s_cbranch_scc0 L_NOFT")
            a("s_mov_b64 exec, 0xff")
            a("buffer_load_dword v43, v42, s[28:31], s58 offen")
            a("s_mov_b64 exec, -1")
            a.label("L_NOFT")
        if opt.get("touch", 1) and n == N_TOUCH:
            a("s_mov_b32 exec_hi, 0")
            a(f"s_xor_b32 s48, s57, {RBOX}")
            a("buffer_load_dword v48, v42, s[28:31], s48 offen"); vq.append("touch")
            a("s_mov_b64 exec, -1")
        if opt.get("npf", 0):
            for w in range(4):
                if n == opt["npf"] + w * opt.get("pfstep", 1):
                    a(f"s_cmp_eq_u32 s45, {w}")
                    a(f"s_cbranch_scc0 L_NOPF{w}")
                    a("buffer_load_dword v54, v53, s[24:27], s6 offen")
                    a.label(f"L_NOPF{w}")
        if opt.get("touchout") and n == N_TOUCH + 1:
            a("v_lshl_add_u32 v51, v17, 4, s47")
            a("s_mul_i32 s48, s43, 485")
            a("v_add_u32 v51, s48, v51")
            a("v_lshlrev_b32 v51, 10, v51")
            a("s_lshl_b32 s48, s42, 7")
            a("s_cmp_eq_u32 s40, 5")
            a("s_cbranch_scc0 L_NOTO")
            a("s_mov_b64 exec, 0x7fffffff")
            a("buffer_load_dword v52, v51, s[36:39], s48 offen")
            a("s_mov_b64 exec, -1")
            a.label("L_NOTO")
        need = [("w", bar_list[n + 1])]
        if HS and n == 0:
            need.append("x0")
        if n + 1 == AV1:
            assert not xq
            need.append("x1")
        if opt.get("trace"):
            a("s_memrealtime s[66:67]")
            a("s_waitcnt lgkmcnt(0)")
            a(f"v_writelane_b32 v60, s66, {n}")
        lwait(need)
        if opt.get("trace"):
            a("s_memrealtime s[66:67]")
            a("s_waitcnt lgkmcnt(0)")
            a(f"v_writelane_b32 v61, s66, {n}")
        a("s_barrier")
        if opt.get("trace"):
            a("s_memrealtime s[66:67]")
            a("s_waitcnt lgkmcnt(0)")
            a(f"v_writelane_b32 v62, s66, {n}")
    if opt.get("trace"):
        a(f"s_add_u32 s96, s18, {128<<20}")
        a("s_addc_u32 s97, s19, 0")
        a("s_and_b32 s97, s97, 0xffff")
        a("s_mov_b32 s98, 0x1000000")
        a("s_mov_b32 s99, 0x20000")
        a("s_lshl_b32 s100, s2, 2")
        a("s_add_u32 s100, s100, s45")
        a("s_mul_i32 s100, s100, 768")
        a("v_lshlrev_b32 v63, 2, v17")
        a("buffer_store_dword v60, v63, s[96:99], s100 offen")
        a("buffer_store_dword v61, v63, s[96:99], s100 offen offset:256")
        a("buffer_store_dword v62, v63, s[96:99], s100 offen offset:512")
    assert nu == NS
    assert N_MODE < B_MODE
    ST.stamp(5)
    ST.cstamp(9)
    if ST.on:
        a("s_getreg_b32 s76, hwreg(HW_REG_XCC_ID)")
        a("s_add_u32 s76, s76, 1000")
    a("s_cmp_eq_u32 s61, 1")
    a(f"s_cselect_b32 s48, 0, {EX_BYTES}")
    a("s_add_u32 s62, s57, s48")
    a("s_lshl_b32 s59, s47, 5")
    a("s_add_u32 s59, s59, s58")
    a("s_lshl_b32 s48, s45, 3")
    a("s_add_u32 s59, s59, s48")
    a("v_and_b32 v50, 1, v17")
    a("v_lshlrev_b32 v50, 2, v50")
    a("s_lshl_b32 s54, s45, 12")
    if opt.get("pads", 1) and opt.get("late", 1):
        a("s_mov_b64 exec, 0")
        for w in range(4):
            a(f"s_cmp_eq_u32 s45, {w}")
            a(f"s_cbranch_scc1 L_LATE{w}")
        a.label("L_PADRETT")
        a("s_mov_b64 exec, -1")
    tail_setup()
    a("s_cmp_eq_u32 s61, 1")
    a(f"s_cselect_b32 s48, 0, {2 * EX_BYTES}")
    a("s_add_u32 s56, s56, s48")
    a(f"s_add_u32 s57, s56, {2 * RBOX}")
    a.label("L_APOLL")
    a("s_sleep %d" % opt.get("asleep", 1))
    a("buffer_load_dword v44, v50, s[28:31], s59 offen offset:512 sc1")
    a("s_sub_u32 s63, s63, 1")
    a("s_waitcnt vmcnt(0)")
    a("s_cmp_eq_u32 s63, 0")
    a("s_cbranch_scc1 L_AGOT")
    a("v_cmp_ne_u32 vcc, 1, v44")
    a("s_cmp_eq_u64 vcc, 0")
    a("s_cbranch_scc0 L_APOLL")
    a.label("L_AGOT")
    a("s_mov_b32 m0, s54")
    a(f"s_mov_b32 s63, {SPIN_LIMIT}")
    for q in range(4):
        a(f"buffer_load_dwordx4 v49, s[28:31], s62 offen offset:{q*1024} sc1 lds")
    a("s_waitcnt vmcnt(0)")
    a("s_barrier")
    a("s_barrier")
    ST.stamp(14)
    a("s_branch L_POLL")
    a.label("L_CODE_END")
    return NV


def insert_pads(a, spacing, first, late):
    import subprocess, re, tempfile
    is_ins = lambda ln: ln.startswith("    ") and not ln.strip().startswith(";")

    def addresses():
        defined = {ln[:-1] for ln in a.lines if ln.endswith(":")}
        extra = "".join(f"L_PAD{j}:\n" for j in range(1, 200) if f"L_PAD{j}" not in defined)
        extra += "".join(f"L_LATE{j}:\n" for j in range(40))
        src = '.amdgcn_target "amdgcn-amd-amdhsa--gfx950"\n.text\n' + a.text() + extra
        with tempfile.TemporaryDirectory() as d:
            open(d + "/t.s", "w").write(src)
            subprocess.run(["clang", "-x", "assembler", "-target", "amdgcn-amd-amdhsa", "-mcpu=gfx950", "-c", d + "/t.s", "-o", d + "/t.o"], check=True)
            dis = subprocess.run(["llvm-objdump", "-d", "--mcpu=gfx950", d + "/t.o"], capture_output=True, text=True).stdout
        return [int(m.group(1), 16) for m in re.finditer(r"// ([0-9A-F]{12}):", dis)]

    addrs = addresses()
    idx = [i for i, ln in enumerate(a.lines) if is_ins(ln)]
    assert len(addrs) == len(idx), (len(addrs), len(idx))
    nopad = set()
    off_ = False
    for i_, ln in enumerate(a.lines):
        t_ = ln.strip()
        if off_:
            nopad.add(i_)
        if (t_.startswith("s_mov_b64 exec") and not t_.endswith("-1")) or "saveexec" in t_ or "exec_lo" in t_ or "exec_hi" in t_:
            off_ = True
        if t_ == "s_mov_b64 exec, -1" or t_ == "s_endpgm":
            off_ = False
    pos = []
    k = 0
    n = 0
    while True:
        target = first + k * spacing
        while n < len(addrs) and addrs[n] + 4 * k < target:
            n += 1
        if n >= len(addrs) - 4:
            break
        while idx[n] in nopad:
            n += 1
        pos.append(idx[n]); n += 1; k += 1
    lb = next(i_ for i_, ln in enumerate(a.lines) if "LATE_BEGIN" in ln)
    le = next(i_ for i_, ln in enumerate(a.lines) if "LATE_END" in ln)
    lpos = [q for q in pos if late and lb <= q < le]
    epos = [q for q in pos if q not in lpos]
    NP, NL = len(epos), len(lpos)
    assert NP >= 8 and (not late or NL >= 4), (NP, NL)
    ins = {}
    for k in range(1, NP + 1):
        nxt = f"L_PAD{k + 8}" if k + 8 <= NP else ("L_PADRETC" if k % 2 == 1 else "L_PADRETL")
        ins[epos[k - 1]] = [f"L_PAD{k}:", f"    s_cbranch_execz {nxt}"]
    for k in range(NL):
        nxt = f"L_LATE{k + 4}" if k + 4 < NL else "L_PADRETT"
        ins[lpos[k]] = [f"L_LATE{k}:", f"    s_cbranch_execz {nxt}"]
    for q in sorted(ins, reverse=True):
        a.lines[q:q] = ins[q]
    print("pads:", NP, NL, file=sys.stderr)


def main():
    opt = {}
    for arg in sys.argv[2:]:
        k, v = arg.split("=")
        opt[k] = int(v)
    a = Asm()
    nv = gen(a, opt)
    if opt.get("pads", 1):
        insert_pads(a, opt.get("pspace", 512), opt.get("pfirst", 2560), opt.get("late", 1))
    out = HEADER
    out += f"; @launch grid=(256,1,1) block=(512,1,1) lds={LDS_BYTES}\n"
    out += '.amdgcn_target "amdgcn-amd-amdhsa--gfx950"\n.text\n'
    out += a.text()
    out += '.section .rodata,"a"\n'
    out += kd(KNAME, nv, 102 if (opt.get("stamps") or opt.get("fixed") or opt.get("trace")) else 64)
    open(sys.argv[1], "w").write(out)


if __name__ == "__main__":
    main()
```

```python
import sys, struct
from gen2 import Asm, vr, srd, Stamps, kd, HEADER, KNAME, f2u

PASSES = [(0, 0), (1, 0), (0, 1), (1, 1)]
J = 16
W_BYTES = 31 * 512 * 512 * 2
OUT_BYTES = 2 * 485 * 512 * 2
RBOX = 16384
EX_BYTES = 256 * RBOX
FLAG_OFF = 3 * EX_BYTES
WS_BYTES = 3 * EX_BYTES + 16 * 1024
PLANE = 34 * 1024
XLDS = 2 * PLANE
RING_UNITS = 22
HALF = 11
RING_BASE = XLDS
MODE_LDS = XLDS + RING_UNITS * 4096
TL = MODE_LDS + 256
LDS_BYTES = MODE_LDS + 512
SPIN_LIMIT = 40000


def steps_list():
    st = []
    for cb, p in PASSES:
        for i in range(16 - p):
            st.append((cb, p, i, 2 * i + p))
    return st


def gen(a, opt):
    RX = 32
    for k_, v_ in dict(nA=6, xper=1, x1=1, av1=13, xps=4, per0=6).items():
        opt.setdefault(k_, v_)
    loader_ctx = [False]
    ST = Stamps(a, opt.get("stamps", 0))
    if "probe" in opt:
        class P:
            on = False
            def init(self): pass
            def cstamp(self, i): pass
            def dump(self, *x): pass
            def stamp(self, i):
                if i == opt["probe"] and not loader_ctx[0]:
                    a("s_memrealtime s[64:65]")
        ST = P()
        opt["fixed"] = 3000
    V_ACC = 16
    V_W = 80
    V_X = 92
    V_XA = V_X + 4 * RX
    V_WA = V_XA + 8
    V_PA = V_WA + 2
    V_FA = V_WA + 3
    V_RA = V_WA + 4
    NV = V_WA + 6
    st = steps_list()
    NS = len(st)
    N0 = opt.get("n0", 4)
    LA = opt.get("la", 20)
    HS = opt.get("hs", 4)
    FS = opt.get("fs", 1)
    CBSW = opt.get("cbswap", 2)

    a.raw(f".globl {KNAME}")
    a.raw(".p2align 12")
    a.raw(".p2align 8")
    a.raw(f".type {KNAME},@function")
    a.label(KNAME)
    a("s_cmp_ge_u32 s2, 256")
    a("s_cbranch_scc1 L_END0")
    ST.init()
    ST.stamp(0)
    if opt.get("fixed"):
        a("s_memrealtime s[64:65]")
    a("s_load_dwordx8 s[4:11], s[0:1], 0")
    a("s_load_dwordx8 s[12:19], s[0:1], 32")
    a("v_lshrrev_b32 v16, 6, v0")
    a("v_and_b32 v17, 63, v0")
    MAP = opt.get("map", 1)
    if MAP == 1:
        a("s_and_b32 s42, s2, 3")
        a("v_readfirstlane_b32 s40, v16")
        a("s_lshl_b32 s42, s42, 1")
        a("s_lshr_b32 s48, s2, 7")
        a("s_add_u32 s42, s42, s48")
        a("s_bfe_u32 s47, s2, 0x40003")
        a("s_bfe_u32 s43, s2, 0x10002")
        a("s_and_b32 s41, s47, 7")
        a("s_lshr_b32 s44, s47, 3")
    elif MAP == 0:
        a("s_and_b32 s42, s2, 7")
        a("v_readfirstlane_b32 s40, v16")
        a("s_bfe_u32 s47, s2, 0x40003")
        a("s_lshr_b32 s43, s2, 7")
        a("s_and_b32 s41, s47, 7")
        a("s_lshr_b32 s44, s47, 3")
    else:
        a("s_and_b32 s47, s2, 15")
        a("v_readfirstlane_b32 s40, v16")
        a("s_bfe_u32 s42, s2, 0x30004")
        a("s_lshr_b32 s43, s2, 7")
        a("s_and_b32 s41, s47, 7")
        a("s_lshr_b32 s44, s47, 3")
    a("s_and_b32 s45, s40, 3")
    a("s_lshl_b32 s46, s43, 3")
    a("s_add_u32 s46, s46, s42")
    a("s_mul_i32 s52, s43, 1024000")
    a("s_lshl_b32 s48, s44, 19")
    a("s_add_u32 s52, s52, s48")
    a("s_lshl_b32 s48, s41, 7")
    a("s_add_u32 s52, s52, s48")
    a("s_and_b32 s48, s41, 1")
    a("s_lshl_b32 s48, s48, 14")
    a("s_sub_u32 s52, s52, s48")
    a("s_lshl_b32 s48, s45, 15")
    a("s_add_u32 s60, s52, s48")
    a("s_lshl_b32 s61, s45, 11")
    a("s_and_b32 s48, s42, %d" % (1 if opt.get("xswap", 1) else 0))
    a("s_lshl_b32 s49, s48, 18")
    a("s_add_u32 s50, s60, s49")
    a("s_xor_b32 s49, s49, 0x40000")
    a("s_add_u32 s60, s60, s49")
    a("s_lshl_b32 s49, s48, 14")
    a("s_add_u32 s51, s61, s49")
    a("s_xor_b32 s49, s49, 0x4000")
    a("s_add_u32 s61, s61, s49")
    a("v_lshrrev_b32 v18, 4, v17")
    a("v_lshlrev_b32 v18, 12, v18")
    a("v_bfe_u32 v19, v17, 3, 1")
    a("v_lshl_add_u32 v18, v19, 11, v18")
    a("v_and_b32 v19, 7, v17")
    a("v_lshl_add_u32 v22, v19, 4, v18")
    a("s_lshl_b32 s48, s45, 5")
    a("v_xor_b32 v20, s48, v22")
    a("v_xor_b32 v21, 0x800, v20")
    a("s_add_u32 s48, s43, 1")
    a("s_mul_i32 s22, s48, 1024000")
    a("s_mov_b32 s23, 0x20000")
    a("s_cmp_ge_u32 s40, 4")
    a("s_cbranch_scc0 L_COMPUTE")

    XB = {"B": (60, 61)}

    def x_piece(p, i, e):
        if i < 4:
            ss, sl = (50, 51) if i < 2 else XB["B"]
            a(f"s_add_u32 m0, s{sl}, {p*PLANE + (i & 1)*8192 + e*1024}")
            a(f"s_add_u32 s48, s{ss}, {p*1024 + (i & 1)*131072 + e*16384}")
            if (i & 1) == 0 and e == 0:
                a("s_max_i32 s48, s48, 0")
            a(f"buffer_load_dwordx4 v{20 + (i & 1)}, s[20:23], s48 offen lds")
        else:
            a(f"s_add_u32 m0, s53, {p*PLANE}")
            a(f"s_add_u32 s48, s52, {p*1024}")
            a("buffer_load_dwordx4 v22, s[20:23], s48 offen lds")

    def gb_loads():
        a("s_lshl_b32 s48, s42, 7")
        a("s_lshl_b32 s49, s47, 3")
        a("s_add_u32 s48, s48, s49")
        a("s_load_dwordx2 s[8:9], s[8:9], s48")
        a("s_load_dwordx2 s[10:11], s[10:11], s48")
        a("s_load_dwordx2 s[12:13], s[12:13], s48")

    def other_srds():
        srd(a, 28, 18, 19, WS_BYTES)
        srd(a, 36, 14, 15, OUT_BYTES)

    def flag_area(dst):
        a(f"s_lshl_b32 s{dst}, s46, 10")
        a(f"s_add_u32 s{dst}, s{dst}, {FLAG_OFF}")

    def own_box(dst):
        a(f"s_lshl_b32 s{dst}, s46, 4")
        a(f"s_add_u32 s{dst}, s{dst}, s47")
        a(f"s_lshl_b32 s{dst}, s{dst}, 14")

    c1 = -2.0 * 1.4426950408889634 * 0.7978845608028654
    c2 = c1 * 0.044715

    def tail_setup():
        a("s_lshl_b32 s56, s46, 4")
        a("s_lshr_b32 s49, s40, 2")
        a("s_lshl_b32 s49, s49, 3")
        a("s_add_u32 s56, s56, s49")
        a("s_bfe_u32 s49, s40, 0x10001")
        a("s_add_u32 s56, s56, s49")
        a("s_lshl_b32 s56, s56, 14")
        a("s_lshl_b32 s49, s47, 10")
        a("s_add_u32 s56, s56, s49")
        flag_area(60)
        a("s_lshr_b32 s49, s47, 2")
        a("s_lshl_b32 s49, s49, 6")
        a("s_add_u32 s60, s60, s49")
        a("s_lshr_b32 s49, s40, 1")
        a("s_lshl_b32 s49, s49, 4")
        a("s_add_u32 s60, s60, s49")
        a("v_and_b32 v3, 7, v0")
        a("v_lshlrev_b32 v24, 5, v3")
        a("v_and_b32 v3, 3, v0")
        a("v_lshlrev_b32 v3, 2, v3")
        a("v_bfe_u32 v15, v0, 5, 1")
        a("v_and_b32 v1, 31, v0")
        a("v_lshlrev_b32 v1, 4, v1")
        a("v_lshl_add_u32 v1, v15, 16, v1")
        a("s_and_b32 s49, s40, 1")
        a("s_lshl_b32 s49, s49, 9")
        a("v_add_u32 v1, s49, v1")
        a("v_and_b32 v2, 15, v0")
        a("v_lshl_add_u32 v2, v2, 4, v15")
        a("v_bfe_u32 v15, v0, 4, 1")
        a("v_lshl_add_u32 v2, v15, 1, v2")
        a("s_lshr_b32 s49, s40, 2")
        a("s_lshl_b32 s49, s49, 8")
        a("s_xor_b32 s48, s45, 2")
        a("s_lshl_b32 s48, s48, 2")
        a("s_add_u32 s49, s49, s48")
        a("v_add_u32 v2, s49, v2")
        a("s_movk_i32 s49, 485")
        a("v_cmp_gt_u32 s[24:25], s49, v2")
        a("s_mul_i32 s49, s43, 485")
        a("v_add_u32 v2, s49, v2")
        a("v_lshlrev_b32 v2, 10, v2")
        a("s_lshl_b32 s48, s42, 7")
        a("s_lshl_b32 s49, s47, 3")
        a("s_add_u32 s48, s48, s49")
        a("v_add_u32 v2, s48, v2")
        a("v_lshrrev_b32 v4, 3, v0")
        a("v_lshlrev_b32 v4, 2, v4")
        a(f"v_add_u32 v4, {TL}, v4")
        a("v_bfe_u32 v15, v0, 3, 3")
        a("v_lshl_add_u32 v5, v15, 2, v24")
        a(f"v_add_u32 v5, {TL}, v5")
        a(f"v_mov_b32 v12, {f2u(c1):#x}")
        a(f"v_mov_b32 v13, {f2u(c1):#x}")
        a(f"s_mov_b32 s20, {f2u(c2):#x}")
        a(f"s_mov_b32 s21, {f2u(c2):#x}")
        a("s_mov_b32 s22, 1.0")
        a("s_mov_b32 s23, 1.0")
        a(f"s_mov_b32 s26, {f2u(1.0/485.0):#x}")
        a("s_mov_b32 s27, 0xffff0000")
        a(f"s_mov_b32 s63, {SPIN_LIMIT}")
        a("s_waitcnt lgkmcnt(0)")
        a("s_lshl_b32 s4, s8, 16")
        a("s_and_b32 s5, s8, 0xffff0000")
        a("s_lshl_b32 s6, s9, 16")
        a("s_and_b32 s7, s9, 0xffff0000")
        a("s_mov_b32 vcc_lo, 0")
        a("s_mov_b32 vcc_hi, -1")
        a("v_mov_b32 v11, s10")
        a("v_mov_b32 v24, s11")
        a("v_mov_b32 v14, s12")
        a("v_mov_b32 v25, s13")
        a("v_cndmask_b32 v11, v11, v24, vcc")
        a("v_cndmask_b32 v14, v14, v25, vcc")
        a("s_mov_b32 vcc_lo, 0xffff0000")
        a("s_mov_b32 vcc_hi, 0xffff0000")
        a("v_lshlrev_b32 v24, 16, v11")
        a("v_lshlrev_b32 v25, 16, v14")
        a("v_and_b32 v11, 0xffff0000, v11")
        a("v_and_b32 v14, 0xffff0000, v14")
        a("v_cndmask_b32 v11, v24, v11, vcc")
        a("v_cndmask_b32 v14, v25, v14, vcc")

    loader_ctx[0] = True
    if opt.get("cpf", 1):
        a("s_getpc_b64 s[56:57]")
        a.label("L_PC")
        a("s_lshr_b32 s48, s2, 3")
        a("s_lshl_b32 s48, s48, 2")
        a("s_add_u32 s48, s48, s45")
        a("s_lshl_b32 s48, s48, 8")
        a("v_lshl_add_u32 v30, v17, 7, s48")
        a("v_min_u32 v30, L_CODE_END-L_PC-4, v30")
        a("s_mov_b64 exec, 3")
        a("global_load_dword v31, v30, s[56:57]")
        a("s_mov_b64 exec, -1")
    a("s_and_b32 s48, s45, 1")
    a("s_add_u32 s48, s48, 32")
    a("s_lshl_b32 s53, s48, 10")
    a("s_lshl_b32 s48, s48, 14")
    a("s_add_u32 s52, s52, s48")
    a("v_lshrrev_b32 v26, 3, v17")
    a("s_lshl_b32 s48, s45, 3")
    a("v_add_u32 v26, s48, v26")
    a("v_lshlrev_b32 v26, 10, v26")
    a("v_bfe_u32 v27, v17, 4, 1")
    a("s_and_b32 s48, s45, 1")
    a("s_lshl_b32 s48, s48, 1")
    a("v_or_b32 v27, s48, v27")
    a("v_lshlrev_b32 v27, 1, v27")
    a("v_xor_b32 v27, v27, v19")
    a("v_lshl_add_u32 v26, v27, 4, v26")
    a("s_lshl_b32 s48, s42, 7")
    a("s_lshl_b32 s49, s41, 16")
    a("s_add_u32 s48, s48, s49")
    if CBSW:
        a(f"s_lshl_b32 s49, s{44 if CBSW == 1 else 43}, 15")
        a("s_add_u32 s48, s48, s49")
    a("v_add_u32 v26, s48, v26")
    a("v_xor_b32 v27, 0x8000, v26")
    a("s_lshl_b32 s54, s45, 10")
    a(f"s_add_u32 s54, s54, {RING_BASE}")
    a("s_mov_b32 s26, %d" % W_BYTES)
    a("s_mov_b32 s27, 0x20000")
    a("s_waitcnt lgkmcnt(0)")
    ST.stamp(1)
    a("s_mov_b32 s24, s6")
    a("s_and_b32 s25, s7, 0xffff")
    a("s_mov_b32 s20, s4")
    a("s_and_b32 s21, s5, 0xffff")
    vq = []
    ghost = []

    def w_unit(u):
        cb, p, i, tap = st[u]
        a(f"s_add_u32 m0, s54, {(u % RING_UNITS) * 4096}")
        a(f"s_mov_b32 s48, {tap * 524288}")
        if opt.get("nodma") and u >= 10:
            vq.append(("w", u)); vq.append("ghost"); vq.pop(); ghost.append(len(vq) - 1)
            return
        a(f"buffer_load_dwordx4 v{26 + cb}, s[24:27], s48 offen lds")
        vq.append(("w", u))

    NW0 = max(2, HS)
    for u in range(NW0):
        w_unit(u)
    if HS:
        lx0 = [(i, 0) for i in range(4)] + [(4, 0)]
        cx0 = [(i, 1) for i in range(4)]
    else:
        lx0 = [(2, 0), (2, 1), (3, 0), (3, 1), (4, 0)]
        cx0 = [(0, 0), (0, 1), (1, 0), (1, 1)]
    for i, e in lx0:
        x_piece(0, i, e); vq.append("x0")
    for u in range(NW0, N0):
        w_unit(u)
    a("s_branch L_LOADLOOP")
    a.label("L_END0")
    a("s_endpgm")

    loader_ctx[0] = False
    a.label("L_COMPUTE")
    a("v_and_b32 v23, 15, v17")
    a("v_lshrrev_b32 v16, 4, v17")
    for d in range(2):
        a(f"v_add_u32 v18, {d}, v23")
        a("v_and_b32 v18, 7, v18")
        a("v_lshlrev_b32 v18, 1, v18")
        a("v_xor_b32 v18, v16, v18")
        a("v_lshlrev_b32 v18, 4, v18")
        a(f"v_lshl_add_u32 v{V_XA + 4*d}, v23, 11, v18")
        if CBSW:
            a(f"s_lshl_b32 s48, s{44 if CBSW == 1 else 43}, 6")
            a(f"v_xor_b32 v{V_XA + 4*d}, s48, v{V_XA + 4*d}")
    a("s_waitcnt lgkmcnt(0)")
    ST.stamp(1)
    a("s_mov_b32 s20, s4")
    a("s_and_b32 s21, s5, 0xffff")
    for i, e in cx0:
        x_piece(0, i, e)
    gb_loads()
    other_srds()
    for d in range(2):
        for z in range(1, 4):
            a(f"v_xor_b32 v{V_XA + 4*d + z}, {z << 6}, v{V_XA + 4*d}")
    a("v_lshrrev_b32 v18, 2, v23")
    a("v_lshl_add_u32 v18, v16, 3, v18")
    a("v_lshlrev_b32 v18, 7, v18")
    a("v_lshrrev_b32 v19, 3, v23")
    a("v_and_b32 v26, 1, v16")
    a("v_lshl_or_b32 v19, v26, 1, v19")
    a("v_xor_b32 v19, s40, v19")
    a("v_lshl_add_u32 v18, v19, 5, v18")
    a("v_and_b32 v19, 3, v23")
    a("v_lshl_add_u32 v18, v19, 3, v18")
    a(f"v_add_u32 v{V_WA}, {RING_BASE}, v18")
    a(f"v_add_u32 v{V_WA+1}, {RING_BASE + HALF*4096}, v18")
    a("s_lshl_b32 s48, s40, 2")
    a("v_add_u32 v6, s48, v16")
    a("v_lshlrev_b32 v6, 10, v6")
    a("v_lshl_add_u32 v6, v23, 4, v6")
    own_box(55)
    a("s_lshl_b32 s58, s46, 18")
    a("s_xor_b32 s48, s47, 1")
    a("s_lshl_b32 s48, s48, 14")
    a("s_lshl_b32 s49, s40, 12")
    a("s_add_u32 s48, s48, s49")
    a("s_and_b32 s49, s41, 1")
    a("s_lshl_b32 s59, s49, 4")
    a("s_sub_u32 s48, s48, s59")
    a(f"v_lshl_add_u32 v{V_PA}, v17, 4, s48")
    a("s_cmp_eq_u32 s44, 1")
    a(f"s_cselect_b32 s59, {(-8 * RBOX + 256) & 0xffffffff:#x}, 0")
    a("s_cselect_b32 s57, 0, 0x40000000")
    a("s_add_u32 s59, s59, s57")
    a("s_cmp_eq_u32 s49, 1")
    a("s_cselect_b32 s59, s59, 0")
    a("v_cmp_eq_u32 vcc, 0, v23")
    a("v_mov_b32 v18, s59")
    a("s_nop 0")
    a("v_cndmask_b32 v18, 0, v18, vcc")
    a(f"v_add_u32 v{V_PA}, v{V_PA}, v18")
    a("s_xor_b32 s48, s47, 1")
    a("s_lshl_b32 s48, s48, 5")
    a("s_lshl_b32 s57, s40, 3")
    a("s_add_u32 s48, s48, s57")
    a("s_add_u32 s48, s48, 512")
    a("s_lshl_b32 s49, s49, 8")
    a("s_or_b32 s49, s49, 4")
    a("v_and_b32 v18, 1, v17")
    a("v_mul_u32_u24 v18, s49, v18")
    a(f"v_xor_b32 v{V_FA}, s48, v18")
    flag_area(59)
    a("s_lshl_b32 s62, s40, 6")
    a("s_add_u32 s62, s62, s59")
    a("s_lshl_b32 s48, s44, 5")
    a("s_add_u32 s62, s62, s48")
    a("s_and_b32 s48, s41, 1")
    a("s_lshl_b32 s48, s48, 4")
    a("s_add_u32 s62, s62, s48")
    a("s_lshr_b32 s48, s41, 1")
    a("s_lshl_b32 s48, s48, 2")
    a("s_add_u32 s62, s62, s48")
    a("s_lshl_b32 s48, s40, 12")
    a(f"v_lshl_add_u32 v{V_RA}, v17, 4, s48")
    a("v_mov_b32 v8, 1")
    a("v_mov_b32 v9, 0")
    a(f"v_mov_b32 v7, {MODE_LDS}")
    def pad_walk(first, ret):
        if not opt.get("pads", 1):
            return
        a("s_mov_b64 exec, 0")
        for w in range(4):
            a(f"s_cmp_eq_u32 s45, {w}")
            a(f"s_cbranch_scc1 L_PAD{2 * w + first}")
        a.label(ret)
        a("s_mov_b64 exec, -1")

    pad_walk(1, "L_PADRETC")
    tail_setup()
    a("s_waitcnt vmcnt(0)")
    ST.stamp(2)
    a("s_barrier")
    ST.stamp(3)

    frags = []
    pass_off = {}
    for cb, p in PASSES:
        pass_off[(cb, p)] = len(frags)
        for f in range(16 - p + J - 1):
            frags.append((cb, p, f))
    AV1 = opt.get("av1", 11)
    B_MODE = opt.get("bmode", 20)
    LP = NS - 15
    FU = 4

    def x_avail(F):
        cb, p, f = frags[F]
        if p == 1:
            return AV1
        if HS and not (F < 31 and 8 <= f <= 15):
            return 1
        return 0

    blocks = []
    for i in range(HS):
        blocks.append((i, [j for j in range(J) if 8 <= i + j <= 15]))
    for i in range(HS):
        blocks.append((i, [j for j in range(J) if not 8 <= i + j <= 15]))
    for t in range(HS, LP):
        blocks.append((t, list(range(J))))
    HA = len(blocks)
    for t in range(LP, NS):
        blocks.append((t, list(range(8))))
    HB = len(blocks)
    for t in range(LP, NS - FU):
        blocks.append((t, list(range(8, 16))))
    NB = len(blocks)
    assert HS == 4
    bar_at = {opt.get("hsbar", 3): NW0 - 1, 2 * HS - 1: 5}
    for bi, (t, js) in enumerate(blocks):
        if 2 * HS <= bi < HA and t % 2 == 1:
            bar_at[bi] = t + 2
    bar_at[HA - 2] = LP + 3
    bar_at[HA + 2] = LP + 8
    bar_at[HA + 7] = NS - 1
    bar_list = [NW0 - 1] + [bar_at[k] for k in sorted(bar_at)]
    NWB = len(bar_list)

    def w_avail(u):
        return min(n for n, m in enumerate(bar_list) if m >= u)

    xorder = list(range(8, 16)) + list(range(8)) + list(range(16, len(frags)))
    S = dict(lds_q=[], waited=-1, bars=0, nx=0, nw=0, init=set())
    offL = pass_off[PASSES[-1]]
    slot = lambda f: V_X + 4 * ((offL + f) % RX)
    PA = [slot(k) for k in range(4)]
    RAW = [slot(4 + k) for k in range(4)]
    WF = [slot(30), slot(31), slot(8), slot(9)]
    PB = [slot(10 + k) for k in range(4)]

    def wreg(key):
        return WF[key - NB] if key >= NB else V_W + 4 * (key % 3)

    def wunit(key):
        return NS - FU + (key - NB) if key >= NB else blocks[key][0]

    def issue_x(F):
        cb, p, f = frags[F]
        d = f >> 4
        z = (f & 1) * 2 + cb
        r = V_X + 4 * (F % RX)
        assert S["bars"] >= x_avail(F)
        a(f"ds_read_b128 {vr(r,4)}, v{V_XA + 4*d + z} offset:{p*PLANE + (f>>1)*256}")
        S["lds_q"].append(("x", F))

    def issue_w(key, h):
        u = wunit(key)
        uu = u % RING_UNITS
        off = (uu % HALF) * 4096 + h * 512
        assert S["bars"] >= w_avail(u), (u, S["bars"])
        a(f"ds_read_b64_tr_b16 {vr(wreg(key) + 2*h,2)}, v{V_WA + uu // HALF} offset:{off}")
        S["lds_q"].append(("w", key, h))

    def wait_for(tags):
        q = S["lds_q"]
        idx = max(q.index(tg) for tg in tags)
        if idx <= S["waited"]:
            return 0
        n = len(q) - 1 - idx
        if n > 15:
            n = 15
            idx = len(q) - 1 - n
        a(f"s_waitcnt lgkmcnt({n})")
        S["waited"] = idx
        return 1

    def mfma(j, key, F):
        acc = V_ACC + 4 * j
        c = vr(acc, 4) if j in S["init"] else "0"
        first = j not in S["init"]
        S["init"].add(j)
        if opt.get("wino") and j % 4 == 3 and not first and key < NB:
            if opt["wino"] >= 2 and j % 8 == 3:
                a(f"ds_read_b128 v[{NV}:{NV+3}], v{V_XA} offset:{(key % 16) * 256}")
                S["lds_q"].append(("dummy", key, j))
            return
        a(f"v_mfma_f32_16x16x32_bf16 {vr(acc,4)}, {vr(wreg(key),4)}, {vr(V_X + 4*(F % RX),4)}, {c}")
        if opt.get("wino", 0) >= 2 and key < HB:
            r = NV + 4 + (j % 4)
            a([f"v_lshlrev_b32 v{r}, 16, v{wreg(key)}", f"v_and_b32 v{r}, s27, v{wreg(key)+1}", f"v_cvt_pk_bf16_f32 v{r}, v{NV+4}, v{NV+5}", f"v_add_f32 v{r}, v{NV+4}, v{NV+5}"][j % 4])

    slow_sites = []

    def store2(ins):
        k = len(slow_sites)
        slow_sites.append(ins)
        a(f"s_cbranch_scc0 L_SL{k}")
        a(ins)
        a.label(f"L_SB{k}")

    def emit_raw(op):
        if isinstance(op, tuple):
            if op[0] == "st":
                store2(op[1])
            elif op[0] == "wait":
                wait_for(op[1])
        else:
            a(op)

    issue_w(0, 0); issue_w(0, 1); S["nw"] = 1
    for k in range(8):
        issue_x(xorder[k]); S["nx"] += 1

    XPS = opt.get("xps", 3)
    mode_blk = next(bi for bi, (t, js) in enumerate(blocks) if bi >= 2 * HS and t == 2 * B_MODE + 1)
    FA = opt.get("fa", 4)
    rawq = []
    for bi, (t, js) in enumerate(blocks):
        cb, p, i, tap = st[t]
        off = pass_off[(cb, p)]
        fmin = off + (i if HS <= bi < HA else 0)
        if 2 * HS <= bi < HA and t % 8 == 4:
            ST.stamp(4 + t // 8)
        side = []
        nb = S["bars"]
        if bi in bar_at:
            side.append(("bar",)); nb += 1
        short_next = bi + 1 < NB and len(blocks[bi + 1][1]) == 8
        upto = bi + (2 if short_next else 1)
        if bi >= NB - 3:
            upto = min(NB + FU - 1, S["nw"] + 1)
        tmpw = S["nw"]
        while tmpw <= upto and tmpw < NB + FU and nb >= w_avail(wunit(tmpw)):
            side += [("w", tmpw, 0), ("w", tmpw, 1)]; tmpw += 1
        S["nw"] = tmpw
        assert tmpw > bi + 1 or tmpw == NB + FU, (bi, tmpw)
        tmp = S["nx"]
        lim = (len(js) - len(side) - 1) if len(js) == 8 else XPS
        cntx = 0
        while cntx < lim and tmp < len(frags) and xorder[tmp] - fmin < RX and nb >= x_avail(xorder[tmp]):
            side.append(("x", xorder[tmp])); tmp += 1; cntx += 1
        if bi == mode_blk:
            assert S["bars"] >= B_MODE
            side.append(("mode",))
        if bi == mode_blk + 2:
            wait_for([("mode",)])
            rawq += ["v_readfirstlane_b32 s61, v10", "s_nop 0", "s_cmp_eq_u32 s61, 1",
                     f"s_cselect_b32 s48, 0, {EX_BYTES}", "s_add_u32 s58, s58, s48", "s_lshl_b32 s48, s48, 1",
                     "s_add_u32 s55, s55, s48", "s_add_u32 s56, s56, s48", f"s_add_u32 s57, s56, {2 * RBOX}",
                     "s_cmp_eq_u32 s61, 1"]
        if bi == HB:
            a.comment("LATE_BEGIN")
            rawq += [None] * 4
            for k in range(4):
                A = V_ACC + 8 * k
                rawq += [f"v_cvt_pk_bf16_f32 v{PA[k] + r}, v{A + 2*r}, v{A + 2*r + 1}" for r in range(4)]
                rawq.append(("st", f"buffer_store_dwordx4 {vr(PA[k], 4)}, v{V_PA}, s[28:31], s58 offen offset:{k*1024}"))
        if bi == HB + FA:
            assert not rawq
            rawq += ["s_waitcnt vmcnt(0)", ("st", f"buffer_store_dword v8, v{V_FA}, s[28:31], s59 offen")]
        fine = bi <= 2 * HS
        for k, j in enumerate(js):
            F = off + i + j
            if fine:
                wait_for([("w", bi, 0), ("w", bi, 1), ("x", F)])
            elif k == 0:
                wait_for([("w", bi, 0), ("w", bi, 1)] + [("x", off + i + jj) for jj in js[:len(js) // 2]])
            elif k == len(js) // 2:
                wait_for([("x", off + i + jj) for jj in js])
            mfma(j, bi, F)
            room = 2
            if side:
                room -= 1
                s = side.pop(0)
                if s[0] == "bar":
                    a("s_barrier"); S["bars"] += 1
                elif s[0] == "w":
                    issue_w(s[1], s[2])
                elif s[0] == "x":
                    issue_x(s[1]); S["nx"] += 1
                elif s[0] == "mode":
                    a("ds_read_b32 v10, v7")
                    S["lds_q"].append(("mode",))
            while rawq and room:
                op = rawq.pop(0); room -= 1
                if op is not None:
                    emit_raw(op)
        assert not side, (bi, side)
    assert S["nx"] == len(frags) and S["nw"] == NB + FU and not rawq
    assert S["bars"] == NWB - 1, (S["bars"], NWB)

    i0_ = st[NS - FU][2]
    wait_for([("w", NB + k, h) for k in range(FU) for h in range(2)] + [("x", len(frags) - 1)])
    seq = [(g_, k, j) for g_ in range(4) for k in range(FU) for j in (8 + 2 * g_, 9 + 2 * g_)]
    BX = opt.get("bx", 1)
    free = []
    pend = []
    cnt = 0
    U = lambda g_: V_ACC + 8 * g_
    for n_, (g_, k, j) in enumerate(seq):
        mfma(j, NB + k, offL + i0_ + k + j); cnt += 1
        if n_ == BX:
            a("s_barrier"); cnt += 1
            for q in range(4):
                a(f"ds_read_b128 {vr(RAW[q], 4)}, v{V_RA} offset:{q*1024}"); cnt += 1
                S["lds_q"].append(("r", q))
            free += [None] * opt.get('fdelay', 15)
            for q in range(4):
                free.append(("wait", [("r", q)]))
                for r in range(4):
                    free.append(f"v_lshlrev_b32 v{U(q) + 2*r}, 16, v{RAW[q] + r}")
                    free.append(f"v_and_b32 v{U(q) + 2*r + 1}, s27, v{RAW[q] + r}")
                free.append(("mark", q))
        if k == FU - 1 and j % 2 == 1:
            A = V_ACC + 4 * (j - 1)
            ops = [f"v_pk_add_f32 v[{U(g_) + 2*r}:{U(g_) + 2*r + 1}], v[{U(g_) + 2*r}:{U(g_) + 2*r + 1}], v[{A + 2*r}:{A + 2*r + 1}]" for r in range(4)]
            ops += [f"v_cvt_pk_bf16_f32 v{PB[g_] + r}, v{U(g_) + 2*r}, v{U(g_) + 2*r + 1}" for r in range(4)]
            ops.append(("st", f"buffer_store_dwordx4 {vr(PB[g_], 4)}, v6, s[28:31], s55 offen offset:{g_*256}"))
            pend += [(cnt + 9, g_, op) for op in ops]
        room = opt.get("froom", 3)
        while room:
            unp = {m[1] for m in free if isinstance(m, tuple) and m[0] == "mark"}
            if pend and pend[0][0] <= cnt and pend[0][1] not in unp and n_ > BX:
                emit_raw(pend.pop(0)[2]); cnt += 1
            elif free:
                op = free.pop(0)
                if isinstance(op, tuple) and op[0] == "mark":
                    continue
                if op is not None:
                    nl = len(a.lines); emit_raw(op); cnt += len(a.lines) - nl
            elif pend:
                a("s_nop 1"); cnt += 2
                break
            else:
                break
            room -= 1
    ST.stamp(12)
    for op in free:
        if op is not None and not (isinstance(op, tuple) and op[0] == "mark"):
            nl = len(a.lines); emit_raw(op); cnt += len(a.lines) - nl
    while pend:
        if pend[0][0] > cnt:
            a(f"s_nop {pend[0][0] - cnt - 1}"); cnt = pend[0][0]
        emit_raw(pend.pop(0)[2]); cnt += 1
    ST.stamp(13)
    a("s_barrier")
    a("s_waitcnt vmcnt(0)")
    store2("buffer_store_dword v8, v9, s[28:31], s62 offen")
    ST.stamp(14)
    D = 48
    a.label("L_POLL")
    a("buffer_load_dword v15, v3, s[28:31], s60 offen sc1")
    a("s_sub_u32 s63, s63, 1")
    a("s_waitcnt vmcnt(0)")
    a("v_cmp_ne_u32 vcc, 1, v15")
    a("s_cmp_eq_u64 vcc, 0")
    a("s_cbranch_scc0 L_POLLMORE")
    a.label("L_GOT")
    ST.stamp(15)
    for q in range(2):
        a(f"buffer_load_dwordx4 {vr(D+4*q,4)}, v1, s[28:31], s{56+q} offen sc1")
    for q in range(2):
        a(f"s_waitcnt vmcnt({1-q})")
        if q == 1:
            ST.stamp(10)
        T = 16 if q == 0 else 24
        for k in range(4):
            a(f"v_lshlrev_b32 v{T+2*k}, 16, v{D+4*q+k}")
            a(f"v_and_b32 v{T+2*k+1}, s27, v{D+4*q+k}")
        if q:
            for k in range(4):
                a(f"v_pk_add_f32 v[{16+2*k}:{17+2*k}], v[{16+2*k}:{17+2*k}], v[{24+2*k}:{25+2*k}]")
    a("s_nop 1")
    for r in range(4):
        a(f"v_permlane32_swap_b32 v{16+r}, v{20+r}")
    a("v_pk_add_f32 v[16:17], v[16:17], v[20:21]")
    a("v_pk_add_f32 v[18:19], v[18:19], v[22:23]")
    a("v_pk_add_f32 v[16:17], v[16:17], s[4:5]")
    a("v_pk_add_f32 v[18:19], v[18:19], s[6:7]")
    for r in range(4):
        a(f"v_cndmask_b32 v{20+r}, 0, v{16+r}, s[24:25]")
    a("v_pk_mul_f32 v[24:25], v[20:21], v[20:21]")
    a("v_pk_mul_f32 v[26:27], v[22:23], v[22:23]")
    a("v_permlane32_swap_b32 v20, v22")
    a("v_permlane32_swap_b32 v21, v23")
    a("v_permlane32_swap_b32 v24, v26")
    a("v_permlane32_swap_b32 v25, v27")
    a("v_add_f32 v20, v20, v22")
    a("v_add_f32 v21, v21, v23")
    a("v_add_f32 v24, v24, v26")
    a("v_add_f32 v25, v25, v27")
    a("s_nop 0")
    a("v_permlane16_swap_b32 v20, v21")
    a("v_permlane16_swap_b32 v24, v25")
    a("v_add_f32 v20, v20, v21")
    a("v_add_f32 v24, v24, v25")
    a("s_nop 0")
    a("v_add_f32_dpp v28, v20, v20 row_ror:8 row_mask:0xf bank_mask:0x3")
    a("v_add_f32_dpp v28, v24, v24 row_ror:8 row_mask:0xf bank_mask:0xc")

    def red8(r):
        for mod in ("row_half_mirror", "quad_perm:[1,0,3,2]", "quad_perm:[2,3,0,1]"):
            a("s_nop 1")
            a(f"v_add_f32_dpp v{r}, v{r}, v{r} {mod} row_mask:0xf bank_mask:0xf")

    red8(28)
    a("ds_write_b32 v4, v28")
    a("s_waitcnt lgkmcnt(0)")
    a("s_barrier")
    a("ds_read_b32 v28, v5")
    a("s_waitcnt lgkmcnt(0)")
    a("v_mul_f32 v28, s26, v28")
    red8(28)
    a("s_nop 1")
    a("v_mov_b32_dpp v29, v28 row_ror:8 row_mask:0xf bank_mask:0xf")
    a("v_fma_f32 v29, -v28, v28, v29")
    a("v_max_f32 v29, 0, v29")
    a(f"v_add_f32 v29, {f2u(1e-5):#x}, v29")
    a("v_rsq_f32 v29, v29")
    a("s_nop 0")
    a("v_mul_f32 v29, v11, v29")
    a("v_fma_f32 v28, -v28, v29, v14")
    for r in range(4):
        a(f"v_readlane_b32 s{48+r}, v29, {16*r}")
    for r in range(4):
        a(f"v_readlane_b32 s{52+r}, v28, {16*r}")
    a("v_pk_mul_f32 v[16:17], v[16:17], s[48:49]")
    a("v_pk_mul_f32 v[18:19], v[18:19], s[50:51]")
    a("v_pk_add_f32 v[16:17], v[16:17], s[52:53]")
    a("v_pk_add_f32 v[18:19], v[18:19], s[54:55]")
    a("v_pk_mul_f32 v[20:21], v[16:17], v[16:17]")
    a("v_pk_mul_f32 v[22:23], v[18:19], v[18:19]")
    a("v_pk_fma_f32 v[20:21], v[20:21], s[20:21], v[12:13]")
    a("v_pk_fma_f32 v[22:23], v[22:23], s[20:21], v[12:13]")
    a("v_pk_mul_f32 v[20:21], v[20:21], v[16:17]")
    a("v_pk_mul_f32 v[22:23], v[22:23], v[18:19]")
    for r in range(4):
        a(f"v_exp_f32 v{20+r}, v{20+r}")
    a("s_nop 0")
    a("v_pk_add_f32 v[20:21], v[20:21], s[22:23]")
    a("v_pk_add_f32 v[22:23], v[22:23], s[22:23]")
    for r in range(4):
        a(f"v_rcp_f32 v{20+r}, v{20+r}")
    a("s_nop 0")
    a("v_pk_mul_f32 v[16:17], v[16:17], v[20:21]")
    a("v_pk_mul_f32 v[18:19], v[18:19], v[22:23]")
    a("v_cvt_pk_bf16_f32 v20, v16, v17")
    a("v_cvt_pk_bf16_f32 v21, v18, v19")
    a("s_and_saveexec_b64 s[26:27], s[24:25]")
    a("s_cbranch_execz L_FIN")
    a("buffer_store_dwordx2 v[20:21], v2, s[36:39], 0 offen" + {0: "", 1: " nt", 2: " sc0"}[opt.get("oflag", 0)])
    a.label("L_FIN")
    if opt.get("probe") == 11:
        a("s_memrealtime s[64:65]")
    if opt.get("probe") == 17:
        a("s_waitcnt vmcnt(0)")
        a("s_memrealtime s[64:65]")
    if opt.get("fixed"):
        a("s_waitcnt vmcnt(0) lgkmcnt(0)")
        a.label("L_FIX")
        a("s_memrealtime s[66:67]")
        a("s_waitcnt lgkmcnt(0)")
        a("s_sub_u32 s66, s66, s64")
        a(f"s_cmp_lt_u32 s66, {opt['fixed']}")
        a("s_cbranch_scc1 L_FIX")
    if ST.on:
        a("s_mov_b64 exec, -1")
        ST.stamp(11)
        a("s_waitcnt vmcnt(0)")
        a("s_cmp_ge_u32 s40, 4")
        a("s_cbranch_scc0 L_ST2")
        ST.stamp(7)
        a.label("L_ST2")
        a("s_barrier")
        ST.dump(18, 40)
    a("s_endpgm")

    a.label("L_POLLMORE")
    a("s_cmp_eq_u32 s63, 0")
    a("s_cbranch_scc1 L_GOT")
    a("s_cmp_eq_u32 s61, 1")
    a("s_cbranch_scc1 L_POLL")
    a("s_sleep 8")
    a("s_branch L_POLL")
    for k, ins in enumerate(slow_sites):
        a.label(f"L_SL{k}")
        a(ins + " sc1")
        a(f"s_branch L_SB{k}")

    loader_ctx[0] = True
    a.label("L_LOADLOOP")
    a("s_mov_b32 s4, s60")
    a("s_mov_b32 s5, s61")
    XB["B"] = (4, 5)
    other_srds()
    flag_area(58)
    for r in range(40, 44):
        a(f"v_mov_b32 v{r}, 0")
    a("v_lshlrev_b32 v49, 4, v17")
    a("s_cmp_eq_u32 s47, 0")
    a("s_cselect_b32 s55, 2, 1")
    a("s_cmp_eq_u32 s40, 4")
    a("s_cselect_b32 s55, s55, 0")
    a("s_cmp_eq_u32 s55, 2")
    a("s_cbranch_scc0 L_NORESET")
    a("buffer_store_dwordx4 v[40:43], v49, s[28:31], s58 offen sc1")
    a.label("L_NORESET")
    reset_pos = len(vq)
    gb_loads()
    srd(a, 32, 16, 17, 256)
    own_box(62)
    a("s_lshl_b32 s60, s46, 4")
    a("v_lshlrev_b32 v42, 7, v17")
    a("s_lshl_b32 s57, s45, 12")
    a("s_add_u32 s57, s57, s62")
    a("s_getreg_b32 s48, hwreg(HW_REG_XCC_ID, 0, 4)")
    a("s_or_b32 s48, s48, 0x10")
    a("v_mov_b32 v41, s48")
    a("s_lshl_b32 s59, s47, 2")
    a("s_add_u32 s59, s59, s58")
    a("v_and_b32 v50, 15, v17")
    a("v_lshlrev_b32 v50, 2, v50")

    if opt.get("npf", 0):
        a("s_lshl_b32 s48, s42, 7")
        a("s_lshl_b32 s49, s41, 16")
        a("s_add_u32 s48, s48, s49")
        a("v_lshl_add_u32 v53, v17, 10, s48")
        a("s_lshl_b32 s6, s45, 2")
        a("s_lshl_b32 s48, s43, 1")
        a("s_add_u32 s6, s6, s48")
        a("s_add_u32 s6, s6, s44")
        a("s_lshl_b32 s6, s6, 20")
        a("s_add_u32 s6, s6, 0x80000")

    def lwait(tags):
        idx = max(k for k, tg in enumerate(vq) if tg in tags)
        n = len(vq) - 1 - idx
        assert n <= 63
        a(f"s_waitcnt vmcnt({n})")

    def one_lane(ins):
        a("s_mov_b64 exec, 1")
        a(ins)
        a("s_mov_b64 exec, -1")

    nu = N0
    pad_walk(2, "L_PADRETL")
    ST.stamp(2)
    lwait([("w", NW0 - 1)] + ([] if HS else ["x0"]))
    ST.stamp(3)
    a("s_barrier")
    ST.stamp(4)
    ST.cstamp(8)
    GAP = opt.get("gap", 4)
    opt.setdefault("per0", 4)
    N_RDY = opt.get("nrdy", 2)
    N_RL = opt.get("nrl", 5)
    N_XCC = N_RL + GAP
    N_CHK = N_XCC + GAP
    N_MODE = N_CHK + GAP
    N_TOUCH = opt.get("ntouch", 19)
    xq = [(i, e) for i in range(4) for e in range(2)] + [(4, 0)]
    X1 = opt.get("x1", 3)
    PER = opt.get("per", 3)
    PER2 = opt.get("per2", PER)
    pos = {}
    for n in range(NWB - 1):
        umax = min(NS - 1, 2 * n - 1 + RING_UNITS, 2 * n + 1 + LA)
        if HS and n < 2:
            umax = min(umax, RING_UNITS - 1)
        k = 0
        while nu <= umax and k < (opt.get("per0", 0) if (HS and n == 0) else (opt.get("perA", 2) if n <= opt.get("nA", 0) else PER)):
            w_unit(nu); nu += 1; k += 1
        assert nu > bar_list[n + 1], (n, nu)
        if n >= X1:
            for _ in range(opt.get("xper", 2)):
                if xq:
                    x_piece(1, *xq.pop(0)); vq.append("x1")
        if n == N_RDY and not opt.get("nohs"):
            a("s_cmp_eq_u32 s55, 2")
            a("s_cbranch_scc0 L_NORDY")
            a(f"s_waitcnt vmcnt({len(vq) - reset_pos})")
            one_lane("buffer_store_dword v41, v40, s[32:35], s60 offen sc1")
            a.label("L_NORDY")
        if n == N_RL and not opt.get("nohs"):
            a("s_cmp_eq_u32 s55, 0")
            a("s_cbranch_scc1 L_NORL")
            one_lane("buffer_load_dword v44, v40, s[32:35], s60 offen sc1")
            a.label("L_NORL")
            pos["rl"] = len(vq)
        if n == N_XCC and not opt.get("nohs"):
            a("s_cmp_eq_u32 s55, 0")
            a("s_cbranch_scc1 L_NOXCC")
            a(f"s_waitcnt vmcnt({len(vq) - pos['rl']})")
            a(f"s_mov_b32 s63, {SPIN_LIMIT}")
            a.label("L_RCHK")
            a("v_readfirstlane_b32 s48, v44")
            a("s_cmp_lg_u32 s48, 0")
            a("s_cbranch_scc1 L_ROK")
            a("s_sub_u32 s63, s63, 1")
            a("s_cmp_eq_u32 s63, 0")
            a("s_cbranch_scc1 L_ROK")
            a("s_sleep 4")
            one_lane("buffer_load_dword v44, v40, s[32:35], s60 offen sc1")
            a("s_waitcnt vmcnt(0)")
            a("s_branch L_RCHK")
            a.label("L_ROK")
            one_lane("buffer_store_dword v41, v40, s[28:31], s59 offen offset:256 sc1")
            a.label("L_NOXCC")
        if n == N_CHK and not opt.get("nohs"):
            a("s_cmp_eq_u32 s55, 0")
            a("s_cbranch_scc1 L_NOCHK")
            a("buffer_load_dword v44, v50, s[28:31], s58 offen offset:256 sc1")
            a.label("L_NOCHK")
            pos["chk"] = len(vq)
        if n == N_MODE and opt.get("nohs"):
            a("v_mov_b32 v45, 1")
            a(f"v_mov_b32 v46, {MODE_LDS}")
            a("ds_write_b32 v46, v45")
            a("s_waitcnt lgkmcnt(0)")
        if n == N_MODE and not opt.get("nohs"):
            a("s_cmp_eq_u32 s55, 0")
            a("s_cbranch_scc1 L_NOMODE")
            a(f"s_waitcnt vmcnt({len(vq) - pos['chk']})")
            a(f"s_mov_b32 s63, {SPIN_LIMIT}")
            a.label("L_HCHK")
            a("v_cmp_eq_u32 vcc, 0, v44")
            a("s_cmp_eq_u64 vcc, 0")
            a("s_cbranch_scc1 L_HOK")
            a("s_sub_u32 s63, s63, 1")
            a("s_cmp_eq_u32 s63, 0")
            a("s_cbranch_scc1 L_HOK")
            a("s_sleep 4")
            a("buffer_load_dword v44, v50, s[28:31], s58 offen offset:256 sc1")
            a("s_waitcnt vmcnt(0)")
            a("s_branch L_HCHK")
            a.label("L_HOK")
            a("v_cmp_ne_u32 vcc, v41, v44")
            a("s_cmp_eq_u64 vcc, 0")
            a("s_cselect_b32 s61, 1, 0")
            if opt.get("forceslow"):
                a("s_mov_b32 s61, 0")
            a("v_mov_b32 v45, s61")
            a(f"v_mov_b32 v46, {MODE_LDS}")
            a("ds_write_b32 v46, v45")
            a("s_waitcnt lgkmcnt(0)")
            a.label("L_NOMODE")
        if n == N_MODE + 1:
            a(f"v_mov_b32 v46, {MODE_LDS}")
            a("ds_read_b32 v45, v46")
            a("s_waitcnt lgkmcnt(0)")
            a("v_readfirstlane_b32 s61, v45")
            a("s_and_b32 s49, s61, s55")
            a("s_cmp_eq_u32 s49, 1")
            a("s_cbranch_scc0 L_NOFT")
            a("s_mov_b64 exec, 0xff")
            a("buffer_load_dword v43, v42, s[28:31], s58 offen")
            a("s_mov_b64 exec, -1")
            a.label("L_NOFT")
        if opt.get("touch", 1) and n == N_TOUCH:
            a("s_mov_b32 exec_hi, 0")
            a(f"s_xor_b32 s48, s57, {RBOX}")
            a("buffer_load_dword v48, v42, s[28:31], s48 offen"); vq.append("touch")
            a("s_mov_b64 exec, -1")
        if opt.get("npf", 0):
            for w in range(4):
                if n == opt["npf"] + w * opt.get("pfstep", 1):
                    a(f"s_cmp_eq_u32 s45, {w}")
                    a(f"s_cbranch_scc0 L_NOPF{w}")
                    a("buffer_load_dword v54, v53, s[24:27], s6 offen")
                    a.label(f"L_NOPF{w}")
        if opt.get("touchout") and n == N_TOUCH + 1:
            a("v_lshl_add_u32 v51, v17, 4, s47")
            a("s_mul_i32 s48, s43, 485")
            a("v_add_u32 v51, s48, v51")
            a("v_lshlrev_b32 v51, 10, v51")
            a("s_lshl_b32 s48, s42, 7")
            a("s_cmp_eq_u32 s40, 5")
            a("s_cbranch_scc0 L_NOTO")
            a("s_mov_b64 exec, 0x7fffffff")
            a("buffer_load_dword v52, v51, s[36:39], s48 offen")
            a("s_mov_b64 exec, -1")
            a.label("L_NOTO")
        need = [("w", bar_list[n + 1])]
        if HS and n == 0:
            need.append("x0")
        if n + 1 == AV1:
            assert not xq
            need.append("x1")
        if opt.get("trace"):
            a("s_memrealtime s[66:67]")
            a("s_waitcnt lgkmcnt(0)")
            a(f"v_writelane_b32 v60, s66, {n}")
        lwait(need)
        if opt.get("trace"):
            a("s_memrealtime s[66:67]")
            a("s_waitcnt lgkmcnt(0)")
            a(f"v_writelane_b32 v61, s66, {n}")
        a("s_barrier")
        if opt.get("trace"):
            a("s_memrealtime s[66:67]")
            a("s_waitcnt lgkmcnt(0)")
            a(f"v_writelane_b32 v62, s66, {n}")
    if opt.get("trace"):
        a(f"s_add_u32 s96, s18, {128<<20}")
        a("s_addc_u32 s97, s19, 0")
        a("s_and_b32 s97, s97, 0xffff")
        a("s_mov_b32 s98, 0x1000000")
        a("s_mov_b32 s99, 0x20000")
        a("s_lshl_b32 s100, s2, 2")
        a("s_add_u32 s100, s100, s45")
        a("s_mul_i32 s100, s100, 768")
        a("v_lshlrev_b32 v63, 2, v17")
        a("buffer_store_dword v60, v63, s[96:99], s100 offen")
        a("buffer_store_dword v61, v63, s[96:99], s100 offen offset:256")
        a("buffer_store_dword v62, v63, s[96:99], s100 offen offset:512")
    assert nu == NS
    assert N_MODE < B_MODE
    ST.stamp(5)
    ST.cstamp(9)
    if ST.on:
        a("s_getreg_b32 s76, hwreg(HW_REG_XCC_ID)")
        a("s_add_u32 s76, s76, 1000")
    a("s_cmp_eq_u32 s61, 1")
    a(f"s_cselect_b32 s48, 0, {EX_BYTES}")
    a("s_add_u32 s62, s57, s48")
    a("s_lshl_b32 s59, s47, 5")
    a("s_add_u32 s59, s59, s58")
    a("s_lshl_b32 s48, s45, 3")
    a("s_add_u32 s59, s59, s48")
    a("v_and_b32 v50, 1, v17")
    a("v_lshlrev_b32 v50, 2, v50")
    a("s_lshl_b32 s54, s45, 12")
    if opt.get("pads", 1) and opt.get("late", 1):
        a("s_mov_b64 exec, 0")
        for w in range(4):
            a(f"s_cmp_eq_u32 s45, {w}")
            a(f"s_cbranch_scc1 L_LATE{w}")
        a.label("L_PADRETT")
        a("s_mov_b64 exec, -1")
    tail_setup()
    a("s_cmp_eq_u32 s61, 1")
    a(f"s_cselect_b32 s48, 0, {2 * EX_BYTES}")
    a("s_add_u32 s56, s56, s48")
    a(f"s_add_u32 s57, s56, {2 * RBOX}")
    a.label("L_APOLL")
    a("s_sleep %d" % opt.get("asleep", 1))
    a("buffer_load_dword v44, v50, s[28:31], s59 offen offset:512 sc1")
    a("s_sub_u32 s63, s63, 1")
    a("s_waitcnt vmcnt(0)")
    a("s_cmp_eq_u32 s63, 0")
    a("s_cbranch_scc1 L_AGOT")
    a("v_cmp_ne_u32 vcc, 1, v44")
    a("s_cmp_eq_u64 vcc, 0")
    a("s_cbranch_scc0 L_APOLL")
    a.label("L_AGOT")
    a("s_mov_b32 m0, s54")
    a(f"s_mov_b32 s63, {SPIN_LIMIT}")
    for q in range(4):
        a(f"buffer_load_dwordx4 v49, s[28:31], s62 offen offset:{q*1024} sc1 lds")
    a("s_waitcnt vmcnt(0)")
    a("s_barrier")
    a("s_barrier")
    ST.stamp(14)
    a("s_branch L_POLL")
    a.label("L_CODE_END")
    return NV + (8 if opt.get("wino") else 0)


def insert_pads(a, spacing, first, late):
    import subprocess, re, tempfile
    is_ins = lambda ln: ln.startswith("    ") and not ln.strip().startswith(";")

    def addresses():
        defined = {ln[:-1] for ln in a.lines if ln.endswith(":")}
        extra = "".join(f"L_PAD{j}:\n" for j in range(1, 200) if f"L_PAD{j}" not in defined)
        extra += "".join(f"L_LATE{j}:\n" for j in range(40))
        src = '.amdgcn_target "amdgcn-amd-amdhsa--gfx950"\n.text\n' + a.text() + extra
        with tempfile.TemporaryDirectory() as d:
            open(d + "/t.s", "w").write(src)
            subprocess.run(["clang", "-x", "assembler", "-target", "amdgcn-amd-amdhsa", "-mcpu=gfx950", "-c", d + "/t.s", "-o", d + "/t.o"], check=True)
            dis = subprocess.run(["llvm-objdump", "-d", "--mcpu=gfx950", d + "/t.o"], capture_output=True, text=True).stdout
        return [int(m.group(1), 16) for m in re.finditer(r"// ([0-9A-F]{12}):", dis)]

    addrs = addresses()
    idx = [i for i, ln in enumerate(a.lines) if is_ins(ln)]
    assert len(addrs) == len(idx), (len(addrs), len(idx))
    nopad = set()
    off_ = False
    for i_, ln in enumerate(a.lines):
        t_ = ln.strip()
        if off_:
            nopad.add(i_)
        if (t_.startswith("s_mov_b64 exec") and not t_.endswith("-1")) or "saveexec" in t_ or "exec_lo" in t_ or "exec_hi" in t_:
            off_ = True
        if t_ == "s_mov_b64 exec, -1" or t_ == "s_endpgm":
            off_ = False
    pos = []
    k = 0
    n = 0
    while True:
        target = first + k * spacing
        while n < len(addrs) and addrs[n] + 4 * k < target:
            n += 1
        if n >= len(addrs) - 4:
            break
        while idx[n] in nopad:
            n += 1
        pos.append(idx[n]); n += 1; k += 1
    lb = next(i_ for i_, ln in enumerate(a.lines) if "LATE_BEGIN" in ln)
    le = next(i_ for i_, ln in enumerate(a.lines) if "LATE_END" in ln)
    lpos = [q for q in pos if late and lb <= q < le]
    epos = [q for q in pos if q not in lpos]
    NP, NL = len(epos), len(lpos)
    assert NP >= 8 and (not late or NL >= 4), (NP, NL)
    ins = {}
    for k in range(1, NP + 1):
        nxt = f"L_PAD{k + 8}" if k + 8 <= NP else ("L_PADRETC" if k % 2 == 1 else "L_PADRETL")
        ins[epos[k - 1]] = [f"L_PAD{k}:", f"    s_cbranch_execz {nxt}"]
    for k in range(NL):
        nxt = f"L_LATE{k + 4}" if k + 4 < NL else "L_PADRETT"
        ins[lpos[k]] = [f"L_LATE{k}:", f"    s_cbranch_execz {nxt}"]
    for q in sorted(ins, reverse=True):
        a.lines[q:q] = ins[q]
    print("pads:", NP, NL, file=sys.stderr)


def main():
    opt = {}
    for arg in sys.argv[2:]:
        k, v = arg.split("=")
        opt[k] = int(v)
    a = Asm()
    nv = gen(a, opt)
    if opt.get("pads", 1):
        insert_pads(a, opt.get("pspace", 512), opt.get("pfirst", 2560), opt.get("late", 1))
    out = HEADER
    out += f"; @launch grid=(256,1,1) block=(512,1,1) lds={LDS_BYTES}\n"
    out += '.amdgcn_target "amdgcn-amd-amdhsa--gfx950"\n.text\n'
    out += a.text()
    out += '.section .rodata,"a"\n'
    out += kd(KNAME, nv, 102 if (opt.get("stamps") or opt.get("fixed") or opt.get("trace")) else 64)
    open(sys.argv[1], "w").write(out)


if __name__ == "__main__":
    main()
```

```python
import sys, struct
from gen2 import Asm, vr, srd, Stamps, kd, HEADER, KNAME, f2u

PASSES = [(0, 0), (1, 0), (0, 1), (1, 1)]
J = 16
W_BYTES = 31 * 512 * 512 * 2
OUT_BYTES = 2 * 485 * 512 * 2
RBOX = 16384
EX_BYTES = 256 * RBOX
FLAG_OFF = 3 * EX_BYTES
WS_BYTES = 3 * EX_BYTES + 16 * 1024
PLANE = 34 * 1024
XLDS = 2 * PLANE
RING_UNITS = 22
HALF = 11
RING_BASE = XLDS
MODE_LDS = XLDS + RING_UNITS * 4096
TL = MODE_LDS + 256
LDS_BYTES = MODE_LDS + 512
SPIN_LIMIT = 40000


def steps_list():
    st = []
    for cb, p in PASSES:
        for i in range(16 - p):
            st.append((cb, p, i, 2 * i + p))
    return st


def gen(a, opt):
    RX = 32
    for k_, v_ in dict(nA=6, xper=1, x1=1, av1=13, xps=4, per0=6, map=0).items():
        opt.setdefault(k_, v_)
    loader_ctx = [False]
    ST = Stamps(a, opt.get("stamps", 0))
    if "probe" in opt:
        class P:
            on = False
            def init(self): pass
            def cstamp(self, i): pass
            def dump(self, *x): pass
            def stamp(self, i):
                if i == opt["probe"] and not loader_ctx[0]:
                    a("s_memrealtime s[64:65]")
        ST = P()
        opt["fixed"] = 3000
    V_ACC = 16
    V_W = 80
    V_X = 104
    V_XA = V_X + 4 * RX
    V_WA = V_XA + 8
    V_PA = V_WA + 2
    V_FA = V_WA + 3
    V_RA = V_WA + 4
    NV = V_WA + 6
    st = steps_list()
    NS = len(st)
    N0 = opt.get("n0", 4)
    LA = opt.get("la", 20)
    HS = opt.get("hs", 4)
    FS = opt.get("fs", 1)
    CBSW = opt.get("cbswap", 2)

    a.raw(f".globl {KNAME}")
    a.raw(".p2align 12")
    a.raw(".p2align 8")
    a.raw(f".type {KNAME},@function")
    a.label(KNAME)
    a("s_cmp_ge_u32 s2, 256")
    a("s_cbranch_scc1 L_END0")
    ST.init()
    ST.stamp(0)
    if opt.get("fixed"):
        a("s_memrealtime s[64:65]")
    a("s_load_dwordx8 s[4:11], s[0:1], 0")
    a("s_load_dwordx8 s[12:19], s[0:1], 32")
    a("v_lshrrev_b32 v16, 6, v0")
    a("v_and_b32 v17, 63, v0")
    MAP = opt.get("map", 1)
    if MAP == 1:
        a("s_and_b32 s42, s2, 3")
        a("v_readfirstlane_b32 s40, v16")
        a("s_lshl_b32 s42, s42, 1")
        a("s_lshr_b32 s48, s2, 7")
        a("s_add_u32 s42, s42, s48")
        a("s_bfe_u32 s47, s2, 0x40003")
        a("s_bfe_u32 s43, s2, 0x10002")
        a("s_and_b32 s41, s47, 7")
        a("s_lshr_b32 s44, s47, 3")
    elif MAP == 0:
        a("s_and_b32 s42, s2, 7")
        a("v_readfirstlane_b32 s40, v16")
        a("s_bfe_u32 s47, s2, 0x40003")
        a("s_lshr_b32 s43, s2, 7")
        a("s_and_b32 s41, s47, 7")
        a("s_lshr_b32 s44, s47, 3")
    else:
        a("s_and_b32 s47, s2, 15")
        a("v_readfirstlane_b32 s40, v16")
        a("s_bfe_u32 s42, s2, 0x30004")
        a("s_lshr_b32 s43, s2, 7")
        a("s_and_b32 s41, s47, 7")
        a("s_lshr_b32 s44, s47, 3")
    a("s_and_b32 s45, s40, 3")
    a("s_lshl_b32 s46, s43, 3")
    a("s_add_u32 s46, s46, s42")
    a("s_mul_i32 s52, s43, 1024000")
    a("s_lshl_b32 s48, s44, 19")
    a("s_add_u32 s52, s52, s48")
    a("s_lshl_b32 s48, s41, 7")
    a("s_add_u32 s52, s52, s48")
    a("s_and_b32 s48, s41, 1")
    a("s_lshl_b32 s48, s48, 14")
    a("s_sub_u32 s52, s52, s48")
    a("s_lshl_b32 s48, s45, 15")
    a("s_add_u32 s60, s52, s48")
    a("s_lshl_b32 s61, s45, 11")
    a("s_and_b32 s48, s42, %d" % (1 if opt.get("xswap", 1) else 0))
    a("s_lshl_b32 s49, s48, 18")
    a("s_add_u32 s50, s60, s49")
    a("s_xor_b32 s49, s49, 0x40000")
    a("s_add_u32 s60, s60, s49")
    a("s_lshl_b32 s49, s48, 14")
    a("s_add_u32 s51, s61, s49")
    a("s_xor_b32 s49, s49, 0x4000")
    a("s_add_u32 s61, s61, s49")
    a("v_lshrrev_b32 v18, 4, v17")
    a("v_lshlrev_b32 v18, 12, v18")
    a("v_bfe_u32 v19, v17, 3, 1")
    a("v_lshl_add_u32 v18, v19, 11, v18")
    a("v_and_b32 v19, 7, v17")
    a("v_lshl_add_u32 v22, v19, 4, v18")
    a("s_lshl_b32 s48, s45, 5")
    a("v_xor_b32 v20, s48, v22")
    a("v_xor_b32 v21, 0x800, v20")
    a("s_add_u32 s48, s43, 1")
    a("s_mul_i32 s22, s48, 1024000")
    a("s_mov_b32 s23, 0x20000")
    a("s_cmp_ge_u32 s40, 4")
    a("s_cbranch_scc0 L_COMPUTE")

    XB = {"B": (60, 61)}

    def x_piece(p, i, e):
        if i < 4:
            ss, sl = (50, 51) if i < 2 else XB["B"]
            a(f"s_add_u32 m0, s{sl}, {p*PLANE + (i & 1)*8192 + e*1024}")
            a(f"s_add_u32 s48, s{ss}, {p*1024 + (i & 1)*131072 + e*16384}")
            if (i & 1) == 0 and e == 0:
                a("s_max_i32 s48, s48, 0")
            a(f"buffer_load_dwordx4 v{20 + (i & 1)}, s[20:23], s48 offen lds")
        else:
            a(f"s_add_u32 m0, s53, {p*PLANE}")
            a(f"s_add_u32 s48, s52, {p*1024}")
            a("buffer_load_dwordx4 v22, s[20:23], s48 offen lds")

    def gb_loads():
        a("s_lshl_b32 s48, s42, 7")
        a("s_lshl_b32 s49, s47, 3")
        a("s_add_u32 s48, s48, s49")
        a("s_load_dwordx2 s[8:9], s[8:9], s48")
        a("s_load_dwordx2 s[10:11], s[10:11], s48")
        a("s_load_dwordx2 s[12:13], s[12:13], s48")

    def other_srds():
        srd(a, 28, 18, 19, WS_BYTES)
        srd(a, 36, 14, 15, OUT_BYTES)

    def flag_area(dst):
        a(f"s_lshl_b32 s{dst}, s46, 10")
        a(f"s_add_u32 s{dst}, s{dst}, {FLAG_OFF}")

    def own_box(dst):
        a(f"s_lshl_b32 s{dst}, s46, 4")
        a(f"s_add_u32 s{dst}, s{dst}, s47")
        a(f"s_lshl_b32 s{dst}, s{dst}, 14")

    c1 = -2.0 * 1.4426950408889634 * 0.7978845608028654
    c2 = c1 * 0.044715

    def tail_setup():
        a("s_lshl_b32 s56, s46, 4")
        a("s_lshr_b32 s49, s40, 2")
        a("s_lshl_b32 s49, s49, 3")
        a("s_add_u32 s56, s56, s49")
        a("s_bfe_u32 s49, s40, 0x10001")
        a("s_add_u32 s56, s56, s49")
        a("s_lshl_b32 s56, s56, 14")
        a("s_lshl_b32 s49, s47, 10")
        a("s_add_u32 s56, s56, s49")
        flag_area(60)
        a("s_lshr_b32 s49, s47, 2")
        a("s_lshl_b32 s49, s49, 6")
        a("s_add_u32 s60, s60, s49")
        a("s_lshr_b32 s49, s40, 1")
        a("s_lshl_b32 s49, s49, 4")
        a("s_add_u32 s60, s60, s49")
        a("v_and_b32 v3, 7, v0")
        a("v_lshlrev_b32 v24, 5, v3")
        a("v_and_b32 v3, 3, v0")
        a("v_lshlrev_b32 v3, 2, v3")
        a("v_bfe_u32 v15, v0, 5, 1")
        a("v_and_b32 v1, 31, v0")
        a("v_lshlrev_b32 v1, 4, v1")
        a("v_lshl_add_u32 v1, v15, 16, v1")
        a("s_and_b32 s49, s40, 1")
        a("s_lshl_b32 s49, s49, 9")
        a("v_add_u32 v1, s49, v1")
        a("v_and_b32 v2, 15, v0")
        a("v_lshl_add_u32 v2, v2, 4, v15")
        a("v_bfe_u32 v15, v0, 4, 1")
        a("v_lshl_add_u32 v2, v15, 1, v2")
        a("s_lshr_b32 s49, s40, 2")
        a("s_lshl_b32 s49, s49, 8")
        a("s_xor_b32 s48, s45, 2")
        a("s_lshl_b32 s48, s48, 2")
        a("s_add_u32 s49, s49, s48")
        a("v_add_u32 v2, s49, v2")
        a("s_movk_i32 s49, 485")
        a("v_cmp_gt_u32 s[24:25], s49, v2")
        a("s_mul_i32 s49, s43, 485")
        a("v_add_u32 v2, s49, v2")
        a("v_lshlrev_b32 v2, 10, v2")
        a("s_lshl_b32 s48, s42, 7")
        a("s_lshl_b32 s49, s47, 3")
        a("s_add_u32 s48, s48, s49")
        a("v_add_u32 v2, s48, v2")
        a("v_lshrrev_b32 v4, 3, v0")
        a("v_lshlrev_b32 v4, 2, v4")
        a(f"v_add_u32 v4, {TL}, v4")
        a("v_bfe_u32 v15, v0, 3, 3")
        a("v_lshl_add_u32 v5, v15, 2, v24")
        a(f"v_add_u32 v5, {TL}, v5")
        a(f"v_mov_b32 v12, {f2u(c1):#x}")
        a(f"v_mov_b32 v13, {f2u(c1):#x}")
        a(f"s_mov_b32 s20, {f2u(c2):#x}")
        a(f"s_mov_b32 s21, {f2u(c2):#x}")
        a("s_mov_b32 s22, 1.0")
        a("s_mov_b32 s23, 1.0")
        a(f"s_mov_b32 s26, {f2u(1.0/485.0):#x}")
        a("s_mov_b32 s27, 0xffff0000")
        a(f"s_mov_b32 s63, {SPIN_LIMIT}")
        a("s_waitcnt lgkmcnt(0)")
        a("s_lshl_b32 s4, s8, 16")
        a("s_and_b32 s5, s8, 0xffff0000")
        a("s_lshl_b32 s6, s9, 16")
        a("s_and_b32 s7, s9, 0xffff0000")
        a("s_mov_b32 vcc_lo, 0")
        a("s_mov_b32 vcc_hi, -1")
        a("v_mov_b32 v11, s10")
        a("v_mov_b32 v24, s11")
        a("v_mov_b32 v14, s12")
        a("v_mov_b32 v25, s13")
        a("v_cndmask_b32 v11, v11, v24, vcc")
        a("v_cndmask_b32 v14, v14, v25, vcc")
        a("s_mov_b32 vcc_lo, 0xffff0000")
        a("s_mov_b32 vcc_hi, 0xffff0000")
        a("v_lshlrev_b32 v24, 16, v11")
        a("v_lshlrev_b32 v25, 16, v14")
        a("v_and_b32 v11, 0xffff0000, v11")
        a("v_and_b32 v14, 0xffff0000, v14")
        a("v_cndmask_b32 v11, v24, v11, vcc")
        a("v_cndmask_b32 v14, v25, v14, vcc")

    loader_ctx[0] = True
    if opt.get("cpf", 1):
        a("s_getpc_b64 s[56:57]")
        a.label("L_PC")
        a("s_lshr_b32 s48, s2, 3")
        a("s_lshl_b32 s48, s48, 2")
        a("s_add_u32 s48, s48, s45")
        a("s_lshl_b32 s48, s48, 8")
        a("v_lshl_add_u32 v30, v17, 7, s48")
        a("v_min_u32 v30, L_CODE_END-L_PC-4, v30")
        a("s_mov_b64 exec, 3")
        a("global_load_dword v31, v30, s[56:57]")
        a("s_mov_b64 exec, -1")
    a("s_and_b32 s48, s45, 1")
    a("s_add_u32 s48, s48, 32")
    a("s_lshl_b32 s53, s48, 10")
    a("s_lshl_b32 s48, s48, 14")
    a("s_add_u32 s52, s52, s48")
    a("v_lshrrev_b32 v26, 3, v17")
    a("s_lshl_b32 s48, s45, 3")
    a("v_add_u32 v26, s48, v26")
    a("v_lshlrev_b32 v26, 10, v26")
    a("v_bfe_u32 v27, v17, 4, 1")
    a("s_and_b32 s48, s45, 1")
    a("s_lshl_b32 s48, s48, 1")
    a("v_or_b32 v27, s48, v27")
    a("v_lshlrev_b32 v27, 1, v27")
    a("v_xor_b32 v27, v27, v19")
    a("v_lshl_add_u32 v26, v27, 4, v26")
    a("s_lshl_b32 s48, s42, 7")
    a("s_lshl_b32 s49, s41, 16")
    a("s_add_u32 s48, s48, s49")
    if CBSW:
        a(f"s_lshl_b32 s49, s{44 if CBSW == 1 else 43}, 15")
        a("s_add_u32 s48, s48, s49")
    a("v_add_u32 v26, s48, v26")
    a("v_xor_b32 v27, 0x8000, v26")
    a("s_lshl_b32 s54, s45, 10")
    a(f"s_add_u32 s54, s54, {RING_BASE}")
    a("s_mov_b32 s26, %d" % W_BYTES)
    a("s_mov_b32 s27, 0x20000")
    a("s_waitcnt lgkmcnt(0)")
    ST.stamp(1)
    a("s_mov_b32 s24, s6")
    a("s_and_b32 s25, s7, 0xffff")
    a("s_mov_b32 s20, s4")
    a("s_and_b32 s21, s5, 0xffff")
    vq = []
    ghost = []

    def w_unit(u):
        cb, p, i, tap = st[u]
        a(f"s_add_u32 m0, s54, {(u % RING_UNITS) * 4096}")
        a(f"s_mov_b32 s48, {tap * 524288}")
        if opt.get("nodma") and u >= 10:
            vq.append(("w", u)); vq.append("ghost"); vq.pop(); ghost.append(len(vq) - 1)
            return
        a(f"buffer_load_dwordx4 v{26 + cb}, s[24:27], s48 offen lds")
        vq.append(("w", u))

    NW0 = max(2, HS)
    for u in range(NW0):
        w_unit(u)
    if HS:
        lx0 = [(i, 0) for i in range(4)] + [(4, 0)]
        cx0 = [(i, 1) for i in range(4)]
    else:
        lx0 = [(2, 0), (2, 1), (3, 0), (3, 1), (4, 0)]
        cx0 = [(0, 0), (0, 1), (1, 0), (1, 1)]
    for i, e in lx0:
        x_piece(0, i, e); vq.append("x0")
    for u in range(NW0, N0):
        w_unit(u)
    a("s_branch L_LOADLOOP")
    a.label("L_END0")
    a("s_endpgm")

    loader_ctx[0] = False
    a.label("L_COMPUTE")
    a("v_and_b32 v23, 15, v17")
    a("v_lshrrev_b32 v16, 4, v17")
    for d in range(2):
        a(f"v_add_u32 v18, {d}, v23")
        a("v_and_b32 v18, 7, v18")
        a("v_lshlrev_b32 v18, 1, v18")
        a("v_xor_b32 v18, v16, v18")
        a("v_lshlrev_b32 v18, 4, v18")
        a(f"v_lshl_add_u32 v{V_XA + 4*d}, v23, 11, v18")
        if CBSW:
            a(f"s_lshl_b32 s48, s{44 if CBSW == 1 else 43}, 6")
            a(f"v_xor_b32 v{V_XA + 4*d}, s48, v{V_XA + 4*d}")
    a("s_waitcnt lgkmcnt(0)")
    ST.stamp(1)
    a("s_mov_b32 s20, s4")
    a("s_and_b32 s21, s5, 0xffff")
    for i, e in cx0:
        x_piece(0, i, e)
    gb_loads()
    other_srds()
    for d in range(2):
        for z in range(1, 4):
            a(f"v_xor_b32 v{V_XA + 4*d + z}, {z << 6}, v{V_XA + 4*d}")
    a("v_lshrrev_b32 v18, 2, v23")
    a("v_lshl_add_u32 v18, v16, 3, v18")
    a("v_lshlrev_b32 v18, 7, v18")
    a("v_lshrrev_b32 v19, 3, v23")
    a("v_and_b32 v26, 1, v16")
    a("v_lshl_or_b32 v19, v26, 1, v19")
    a("v_xor_b32 v19, s40, v19")
    a("v_lshl_add_u32 v18, v19, 5, v18")
    a("v_and_b32 v19, 3, v23")
    a("v_lshl_add_u32 v18, v19, 3, v18")
    a(f"v_add_u32 v{V_WA}, {RING_BASE}, v18")
    a(f"v_add_u32 v{V_WA+1}, {RING_BASE + HALF*4096}, v18")
    a("s_lshl_b32 s48, s40, 2")
    a("v_add_u32 v6, s48, v16")
    a("v_lshlrev_b32 v6, 10, v6")
    a("v_lshl_add_u32 v6, v23, 4, v6")
    own_box(55)
    a("s_lshl_b32 s58, s46, 18")
    a("s_xor_b32 s48, s47, 1")
    a("s_lshl_b32 s48, s48, 14")
    a("s_lshl_b32 s49, s40, 12")
    a("s_add_u32 s48, s48, s49")
    a("s_and_b32 s49, s41, 1")
    a("s_lshl_b32 s59, s49, 4")
    a("s_sub_u32 s48, s48, s59")
    a(f"v_lshl_add_u32 v{V_PA}, v17, 4, s48")
    a("s_cmp_eq_u32 s44, 1")
    a(f"s_cselect_b32 s59, {(-8 * RBOX + 256) & 0xffffffff:#x}, 0")
    a("s_cselect_b32 s57, 0, 0x40000000")
    a("s_add_u32 s59, s59, s57")
    a("s_cmp_eq_u32 s49, 1")
    a("s_cselect_b32 s59, s59, 0")
    a("v_cmp_eq_u32 vcc, 0, v23")
    a("v_mov_b32 v18, s59")
    a("s_nop 0")
    a("v_cndmask_b32 v18, 0, v18, vcc")
    a(f"v_add_u32 v{V_PA}, v{V_PA}, v18")
    a("s_xor_b32 s48, s47, 1")
    a("s_lshl_b32 s48, s48, 5")
    a("s_lshl_b32 s57, s40, 3")
    a("s_add_u32 s48, s48, s57")
    a("s_add_u32 s48, s48, 512")
    a("s_lshl_b32 s49, s49, 8")
    a("s_or_b32 s49, s49, 4")
    a("v_and_b32 v18, 1, v17")
    a("v_mul_u32_u24 v18, s49, v18")
    a(f"v_xor_b32 v{V_FA}, s48, v18")
    flag_area(59)
    a("s_lshl_b32 s62, s40, 6")
    a("s_add_u32 s62, s62, s59")
    a("s_lshl_b32 s48, s44, 5")
    a("s_add_u32 s62, s62, s48")
    a("s_and_b32 s48, s41, 1")
    a("s_lshl_b32 s48, s48, 4")
    a("s_add_u32 s62, s62, s48")
    a("s_lshr_b32 s48, s41, 1")
    a("s_lshl_b32 s48, s48, 2")
    a("s_add_u32 s62, s62, s48")
    a("s_lshl_b32 s48, s40, 12")
    a(f"v_lshl_add_u32 v{V_RA}, v17, 4, s48")
    a("v_mov_b32 v8, 1")
    a("v_mov_b32 v9, 0")
    a(f"v_mov_b32 v7, {MODE_LDS}")
    def pad_walk(first, ret):
        if not opt.get("pads", 1):
            return
        a("s_mov_b64 exec, 0")
        for w in range(4):
            a(f"s_cmp_eq_u32 s45, {w}")
            a(f"s_cbranch_scc1 L_PAD{2 * w + first}")
        a.label(ret)
        a("s_mov_b64 exec, -1")

    pad_walk(1, "L_PADRETC")
    tail_setup()
    a("s_waitcnt vmcnt(0)")
    ST.stamp(2)
    a("s_barrier")
    ST.stamp(3)

    frags = []
    pass_off = {}
    for cb, p in PASSES:
        pass_off[(cb, p)] = len(frags)
        for f in range(16 - p + J - 1):
            frags.append((cb, p, f))
    AV1 = opt.get("av1", 11)
    B_MODE = opt.get("bmode", 20)
    LP = NS - 15
    FU = 4

    def x_avail(F):
        cb, p, f = frags[F]
        if p == 1:
            return AV1
        if HS and not (F < 31 and 8 <= f <= 15):
            return 1
        return 0

    PAIR = opt.get("pair", 1)
    epi = []
    blocks = []
    kind = []

    def frag_of(t, j):
        cb, p, i, tap = st[t]
        return pass_off[(cb, p)] + i + j

    def add_single(t, js, kd_):
        e = len(epi); epi.append(t)
        blocks.append([(j, e, frag_of(t, j)) for j in js]); kind.append((kd_, t))

    def add_pair(t, js, kd_):
        e = len(epi); epi.extend([t, t + 1])
        seq_ = [(j, e + d, frag_of(t + d, j)) for j in js for d in range(2)]
        if len(js) == 16:
            blocks.append(seq_[:16]); kind.append((kd_, t))
            blocks.append(seq_[16:]); kind.append((kd_, t + 1))
        else:
            blocks.append(seq_); kind.append((kd_, t))

    def add_run(t0, t1, js, kd_):
        t = t0
        while t < t1:
            if PAIR and t + 1 < t1 and st[t][:2] == st[t + 1][:2]:
                add_pair(t, js, kd_); t += 2
            else:
                add_single(t, js, kd_); t += 1

    for i in range(HS):
        add_single(i, [j for j in range(J) if 8 <= i + j <= 15], "hs")
    for i in range(HS):
        add_single(i, [j for j in range(J) if not 8 <= i + j <= 15], "hs")
    add_run(HS, LP, list(range(J)), "full")
    HA = len(blocks)
    add_run(LP, NS, list(range(8)), "ha")
    HB = len(blocks)
    add_run(LP, NS - FU, list(range(8, 16)), "hb")
    NB = len(blocks)
    NE = len(epi)
    epi += list(range(NS - FU, NS))
    assert HS == 4
    bar_at = {opt.get("hsbar", 3): NW0 - 1, 2 * HS - 1: 5}
    for bi, (kd_, t) in enumerate(kind):
        if kd_ == "full" and t % 2 == 1:
            bar_at[bi] = t + 2
    bar_at[HA - 2] = LP + 3
    ha_of = lambda t: max(bi for bi in range(HA, HB) if kind[bi][1] <= t)
    bar_at[ha_of(LP + 2)] = LP + 9
    bar_at[ha_of(LP + 8 if PAIR else LP + 7)] = NS - 1
    bar_list = [NW0 - 1] + [bar_at[k] for k in sorted(bar_at)]
    NWB = len(bar_list)

    def w_avail(u):
        return min(n for n, m in enumerate(bar_list) if m >= u)

    xorder = list(range(8, 16)) + list(range(8)) + list(range(16, len(frags)))
    S = dict(lds_q=[], waited=-1, bars=0, nx=0, nw=0, init=set())
    offL = pass_off[PASSES[-1]]
    slot = lambda f: V_X + 4 * ((offL + f) % RX)
    PA = [slot(k) for k in range(4)]
    RAW = [slot(4 + k) for k in range(4)]
    WF = [slot(30), slot(31), slot(8), slot(9)]
    PB = [slot(10 + k) for k in range(4)]
    NWBUF = 6
    first_use = {}; last_use = {}
    for bi, blk in enumerate(blocks):
        for (j, e, F) in blk:
            first_use.setdefault(e, bi); last_use[e] = bi
    for k in range(FU):
        first_use[NE + k] = NB; last_use[NE + k] = NB

    def wreg(e):
        return WF[e - NE] if e >= NE else V_W + 4 * (e % NWBUF)

    def issue_x(F):
        cb, p, f = frags[F]
        d = f >> 4
        z = (f & 1) * 2 + cb
        r = V_X + 4 * (F % RX)
        assert S["bars"] >= x_avail(F)
        a(f"ds_read_b128 {vr(r,4)}, v{V_XA + 4*d + z} offset:{p*PLANE + (f>>1)*256}")
        S["lds_q"].append(("x", F))

    def issue_w(e, h):
        u = epi[e]
        uu = u % RING_UNITS
        off = (uu % HALF) * 4096 + h * 512
        assert S["bars"] >= w_avail(u), (u, S["bars"])
        a(f"ds_read_b64_tr_b16 {vr(wreg(e) + 2*h,2)}, v{V_WA + uu // HALF} offset:{off}")
        S["lds_q"].append(("w", e, h))

    def wait_for(tags):
        q = S["lds_q"]
        idx = max(q.index(tg) for tg in tags)
        if idx <= S["waited"]:
            return 0
        n = len(q) - 1 - idx
        if n > 15:
            n = 15
            idx = len(q) - 1 - n
        a(f"s_waitcnt lgkmcnt({n})")
        S["waited"] = idx
        return 1

    def mfma(j, e, F):
        acc = V_ACC + 4 * j
        c = vr(acc, 4) if j in S["init"] else "0"
        S["init"].add(j)
        a(f"v_mfma_f32_16x16x32_bf16 {vr(acc,4)}, {vr(wreg(e),4)}, {vr(V_X + 4*(F % RX),4)}, {c}")

    slow_sites = []

    def store2(ins):
        k = len(slow_sites)
        slow_sites.append(ins)
        a(f"s_cbranch_scc0 L_SL{k}")
        a(ins)
        a.label(f"L_SB{k}")

    def emit_raw(op):
        if isinstance(op, tuple):
            if op[0] == "st":
                store2(op[1])
            elif op[0] == "wait":
                wait_for(op[1])
        else:
            a(op)

    issue_w(0, 0); issue_w(0, 1); S["nw"] = 1
    for k in range(8):
        issue_x(xorder[k]); S["nx"] += 1

    XPS = opt.get("xps", 3)
    mode_blk = next(bi for bi, (kd_, t) in enumerate(kind) if kd_ == "full" and t == 2 * B_MODE + 1)
    FA = opt.get("fa", 2 if PAIR else 4)
    rawq = []
    for bi, blk in enumerate(blocks):
        kd_, t = kind[bi]
        fmin = min(F for b2 in blocks[bi:] for (_, _, F) in b2)
        if kd_ == "full" and t % 8 == 4:
            ST.stamp(4 + t // 8)
        side = []
        nb = S["bars"]
        if bi in bar_at:
            side.append(("bar",)); nb += 1
            if kd_ == "full" and nb <= 20:
                done = [("w", e, h) for e in range(S["nw"]) if epi[e] <= 2 * nb - 1 for h in range(2)]
                assert all(epi[e] > 2 * nb - 1 for e in range(S["nw"], NE)), (bi, nb)
                wait_for(done)
        horizon = bi + (2 if bi + 1 < NB and len(blocks[bi + 1]) == 8 else 1)
        tmpw = S["nw"]
        while tmpw < NE + FU and nb >= w_avail(epi[tmpw]) and (first_use[tmpw] <= horizon or (tmpw >= NE and bi >= NB - 2 and tmpw < S["nw"] + 3 + (bi == NB - 1))):
            if tmpw < NE and tmpw >= NWBUF:
                assert last_use[tmpw - NWBUF] < bi, (bi, tmpw)
            side += [("w", tmpw, 0), ("w", tmpw, 1)]; tmpw += 1
        S["nw"] = tmpw
        tmp = S["nx"]
        lim = (len(blk) - len(side) - 1) if len(blk) == 8 else min(XPS, len(blk) - len(side) - 1)
        cntx = 0
        while cntx < lim and tmp < len(frags) and xorder[tmp] - fmin < RX and nb >= x_avail(xorder[tmp]):
            side.append(("x", xorder[tmp])); tmp += 1; cntx += 1
        if bi == mode_blk:
            assert S["bars"] >= B_MODE
            side.append(("mode",))
        if bi == mode_blk + 2:
            wait_for([("mode",)])
            rawq += ["v_readfirstlane_b32 s61, v10", "s_nop 0", "s_cmp_eq_u32 s61, 1",
                     f"s_cselect_b32 s48, 0, {EX_BYTES}", "s_add_u32 s58, s58, s48", "s_lshl_b32 s48, s48, 1",
                     "s_add_u32 s55, s55, s48", "s_add_u32 s56, s56, s48", f"s_add_u32 s57, s56, {2 * RBOX}",
                     "s_cmp_eq_u32 s61, 1"]
        if bi == HB:
            a.comment("LATE_BEGIN")
            rawq += [None] * 4
            for k in range(4):
                A = V_ACC + 8 * k
                rawq += [f"v_cvt_pk_bf16_f32 v{PA[k] + r}, v{A + 2*r}, v{A + 2*r + 1}" for r in range(4)]
                rawq.append(("st", f"buffer_store_dwordx4 {vr(PA[k], 4)}, v{V_PA}, s[28:31], s58 offen offset:{k*1024}"))
        if bi == HB + FA:
            assert not rawq
            rawq += ["s_waitcnt vmcnt(0)", ("st", f"buffer_store_dword v8, v{V_FA}, s[28:31], s59 offen")]
        fine = bi <= 2 * HS
        for k, (j, e, F) in enumerate(blk):
            if fine:
                wait_for([("w", e, 0), ("w", e, 1), ("x", F)])
            elif k % (len(blk) // 2) == 0:
                nxt = blk[k:k + len(blk) // 2]
                wait_for([("w", e2, h) for (_, e2, _) in nxt for h in range(2)] + [("x", F2) for (_, _, F2) in nxt])
            mfma(j, e, F)
            room = 2
            if side:
                room -= 1
                s = side.pop(0)
                if s[0] == "bar":
                    a("s_barrier"); S["bars"] += 1
                elif s[0] == "w":
                    issue_w(s[1], s[2])
                elif s[0] == "x":
                    issue_x(s[1]); S["nx"] += 1
                elif s[0] == "mode":
                    a("ds_read_b32 v10, v7")
                    S["lds_q"].append(("mode",))
            while rawq and room:
                op = rawq.pop(0); room -= 1
                if op is not None:
                    emit_raw(op)
        assert not side, (bi, side)
    assert S["nx"] == len(frags) and S["nw"] == NE + FU and not rawq, (S["nx"], S["nw"], NE)
    assert S["bars"] == NWB - 1, (S["bars"], NWB)
    NBK = NB
    NB = NE

    i0_ = st[NS - FU][2]
    wait_for([("w", NB + k, h) for k in range(FU) for h in range(2)] + [("x", len(frags) - 1)])
    seq = [(g_, k, j) for g_ in range(4) for k in range(FU) for j in (8 + 2 * g_, 9 + 2 * g_)]
    if PAIR:
        seq = [(g_, k, j) for g_ in range(4) for j in (8 + 2 * g_, 9 + 2 * g_) for k in range(FU)]
    BX = opt.get("bx", 1)
    free = []
    pend = []
    cnt = 0
    U = lambda g_: V_ACC + 8 * g_
    for n_, (g_, k, j) in enumerate(seq):
        mfma(j, NB + k, offL + i0_ + k + j); cnt += 1
        if n_ == BX:
            a("s_barrier"); cnt += 1
            for q in range(4):
                a(f"ds_read_b128 {vr(RAW[q], 4)}, v{V_RA} offset:{q*1024}"); cnt += 1
                S["lds_q"].append(("r", q))
            free += [None] * opt.get('fdelay', 15)
            for q in range(4):
                free.append(("wait", [("r", q)]))
                for r in range(4):
                    free.append(f"v_lshlrev_b32 v{U(q) + 2*r}, 16, v{RAW[q] + r}")
                    free.append(f"v_and_b32 v{U(q) + 2*r + 1}, s27, v{RAW[q] + r}")
                free.append(("mark", q))
        if k == FU - 1 and j % 2 == 1:
            A = V_ACC + 4 * (j - 1)
            ops = [f"v_pk_add_f32 v[{U(g_) + 2*r}:{U(g_) + 2*r + 1}], v[{U(g_) + 2*r}:{U(g_) + 2*r + 1}], v[{A + 2*r}:{A + 2*r + 1}]" for r in range(4)]
            ops += [f"v_cvt_pk_bf16_f32 v{PB[g_] + r}, v{U(g_) + 2*r}, v{U(g_) + 2*r + 1}" for r in range(4)]
            ops.append(("st", f"buffer_store_dwordx4 {vr(PB[g_], 4)}, v6, s[28:31], s55 offen offset:{g_*256}"))
            pend += [(cnt + 9, g_, op) for op in ops]
        room = opt.get("froom", 3)
        while room:
            unp = {m[1] for m in free if isinstance(m, tuple) and m[0] == "mark"}
            if pend and pend[0][0] <= cnt and pend[0][1] not in unp and n_ > BX:
                emit_raw(pend.pop(0)[2]); cnt += 1
            elif free:
                op = free.pop(0)
                if isinstance(op, tuple) and op[0] == "mark":
                    continue
                if op is not None:
                    nl = len(a.lines); emit_raw(op); cnt += len(a.lines) - nl
            elif pend:
                a("s_nop 1"); cnt += 2
                break
            else:
                break
            room -= 1
    ST.stamp(12)
    for op in free:
        if op is not None and not (isinstance(op, tuple) and op[0] == "mark"):
            nl = len(a.lines); emit_raw(op); cnt += len(a.lines) - nl
    while pend:
        if pend[0][0] > cnt:
            a(f"s_nop {pend[0][0] - cnt - 1}"); cnt = pend[0][0]
        emit_raw(pend.pop(0)[2]); cnt += 1
    ST.stamp(13)
    a("s_barrier")
    a("s_waitcnt vmcnt(0)")
    store2("buffer_store_dword v8, v9, s[28:31], s62 offen")
    ST.stamp(14)
    D = 48
    a.label("L_POLL")
    a("buffer_load_dword v15, v3, s[28:31], s60 offen sc1")
    a("s_sub_u32 s63, s63, 1")
    a("s_waitcnt vmcnt(0)")
    a("v_cmp_ne_u32 vcc, 1, v15")
    a("s_cmp_eq_u64 vcc, 0")
    a("s_cbranch_scc0 L_POLLMORE")
    a.label("L_GOT")
    ST.stamp(15)
    for q in range(2):
        a(f"buffer_load_dwordx4 {vr(D+4*q,4)}, v1, s[28:31], s{56+q} offen sc1")
    for q in range(2):
        a(f"s_waitcnt vmcnt({1-q})")
        if q == 1:
            ST.stamp(10)
        T = 16 if q == 0 else 24
        for k in range(4):
            a(f"v_lshlrev_b32 v{T+2*k}, 16, v{D+4*q+k}")
            a(f"v_and_b32 v{T+2*k+1}, s27, v{D+4*q+k}")
        if q:
            for k in range(4):
                a(f"v_pk_add_f32 v[{16+2*k}:{17+2*k}], v[{16+2*k}:{17+2*k}], v[{24+2*k}:{25+2*k}]")
    a("s_nop 1")
    for r in range(4):
        a(f"v_permlane32_swap_b32 v{16+r}, v{20+r}")
    a("v_pk_add_f32 v[16:17], v[16:17], v[20:21]")
    a("v_pk_add_f32 v[18:19], v[18:19], v[22:23]")
    a("v_pk_add_f32 v[16:17], v[16:17], s[4:5]")
    a("v_pk_add_f32 v[18:19], v[18:19], s[6:7]")
    for r in range(4):
        a(f"v_cndmask_b32 v{20+r}, 0, v{16+r}, s[24:25]")
    a("v_pk_mul_f32 v[24:25], v[20:21], v[20:21]")
    a("v_pk_mul_f32 v[26:27], v[22:23], v[22:23]")
    a("v_permlane32_swap_b32 v20, v22")
    a("v_permlane32_swap_b32 v21, v23")
    a("v_permlane32_swap_b32 v24, v26")
    a("v_permlane32_swap_b32 v25, v27")
    a("v_add_f32 v20, v20, v22")
    a("v_add_f32 v21, v21, v23")
    a("v_add_f32 v24, v24, v26")
    a("v_add_f32 v25, v25, v27")
    a("s_nop 0")
    a("v_permlane16_swap_b32 v20, v21")
    a("v_permlane16_swap_b32 v24, v25")
    a("v_add_f32 v20, v20, v21")
    a("v_add_f32 v24, v24, v25")
    a("s_nop 0")
    a("v_add_f32_dpp v28, v20, v20 row_ror:8 row_mask:0xf bank_mask:0x3")
    a("s_nop 1")
    a("v_add_f32_dpp v28, v24, v24 row_ror:8 row_mask:0xf bank_mask:0xc")

    def red8(r):
        for mod in ("row_half_mirror", "quad_perm:[1,0,3,2]", "quad_perm:[2,3,0,1]"):
            a("s_nop 1")
            a(f"v_add_f32_dpp v{r}, v{r}, v{r} {mod} row_mask:0xf bank_mask:0xf")

    red8(28)
    a("ds_write_b32 v4, v28")
    a("s_waitcnt lgkmcnt(0)")
    a("s_barrier")
    a("ds_read_b32 v28, v5")
    a("s_waitcnt lgkmcnt(0)")
    a("v_mul_f32 v28, s26, v28")
    red8(28)
    a("s_nop 1")
    a("v_mov_b32_dpp v29, v28 row_ror:8 row_mask:0xf bank_mask:0xf")
    a("v_fma_f32 v29, -v28, v28, v29")
    a("v_max_f32 v29, 0, v29")
    a(f"v_add_f32 v29, {f2u(1e-5):#x}, v29")
    a("v_rsq_f32 v29, v29")
    a("s_nop 0")
    a("v_mul_f32 v29, v11, v29")
    a("v_fma_f32 v28, -v28, v29, v14")
    for r in range(4):
        a(f"v_readlane_b32 s{48+r}, v29, {16*r}")
    for r in range(4):
        a(f"v_readlane_b32 s{52+r}, v28, {16*r}")
    a("v_pk_mul_f32 v[16:17], v[16:17], s[48:49]")
    a("v_pk_mul_f32 v[18:19], v[18:19], s[50:51]")
    a("v_pk_add_f32 v[16:17], v[16:17], s[52:53]")
    a("v_pk_add_f32 v[18:19], v[18:19], s[54:55]")
    a("v_pk_mul_f32 v[20:21], v[16:17], v[16:17]")
    a("v_pk_mul_f32 v[22:23], v[18:19], v[18:19]")
    a("v_pk_fma_f32 v[20:21], v[20:21], s[20:21], v[12:13]")
    a("v_pk_fma_f32 v[22:23], v[22:23], s[20:21], v[12:13]")
    a("v_pk_mul_f32 v[20:21], v[20:21], v[16:17]")
    a("v_pk_mul_f32 v[22:23], v[22:23], v[18:19]")
    for r in range(4):
        a(f"v_exp_f32 v{20+r}, v{20+r}")
    a("s_nop 0")
    a("v_pk_add_f32 v[20:21], v[20:21], s[22:23]")
    a("v_pk_add_f32 v[22:23], v[22:23], s[22:23]")
    for r in range(4):
        a(f"v_rcp_f32 v{20+r}, v{20+r}")
    a("s_nop 0")
    a("v_pk_mul_f32 v[16:17], v[16:17], v[20:21]")
    a("v_pk_mul_f32 v[18:19], v[18:19], v[22:23]")
    a("v_cvt_pk_bf16_f32 v20, v16, v17")
    a("v_cvt_pk_bf16_f32 v21, v18, v19")
    a("s_and_saveexec_b64 s[26:27], s[24:25]")
    a("s_cbranch_execz L_FIN")
    a("buffer_store_dwordx2 v[20:21], v2, s[36:39], 0 offen" + {0: "", 1: " nt", 2: " sc0"}[opt.get("oflag", 0)])
    a.label("L_FIN")
    if opt.get("probe") == 11:
        a("s_memrealtime s[64:65]")
    if opt.get("probe") == 17:
        a("s_waitcnt vmcnt(0)")
        a("s_memrealtime s[64:65]")
    if opt.get("fixed"):
        a("s_waitcnt vmcnt(0) lgkmcnt(0)")
        a.label("L_FIX")
        a("s_memrealtime s[66:67]")
        a("s_waitcnt lgkmcnt(0)")
        a("s_sub_u32 s66, s66, s64")
        a(f"s_cmp_lt_u32 s66, {opt['fixed']}")
        a("s_cbranch_scc1 L_FIX")
    if ST.on:
        a("s_mov_b64 exec, -1")
        ST.stamp(11)
        a("s_waitcnt vmcnt(0)")
        a("s_cmp_ge_u32 s40, 4")
        a("s_cbranch_scc0 L_ST2")
        ST.stamp(7)
        a.label("L_ST2")
        a("s_barrier")
        ST.dump(18, 40)
    a("s_endpgm")

    a.label("L_POLLMORE")
    a("s_cmp_eq_u32 s63, 0")
    a("s_cbranch_scc1 L_GOT")
    a("s_cmp_eq_u32 s61, 1")
    a("s_cbranch_scc1 L_POLL")
    a("s_sleep 8")
    a("s_branch L_POLL")
    for k, ins in enumerate(slow_sites):
        a.label(f"L_SL{k}")
        a(ins + " sc1")
        a(f"s_branch L_SB{k}")

    loader_ctx[0] = True
    a.label("L_LOADLOOP")
    a("s_mov_b32 s4, s60")
    a("s_mov_b32 s5, s61")
    XB["B"] = (4, 5)
    other_srds()
    flag_area(58)
    for r in range(40, 44):
        a(f"v_mov_b32 v{r}, 0")
    a("v_lshlrev_b32 v49, 4, v17")
    a("s_cmp_eq_u32 s47, 0")
    a("s_cselect_b32 s55, 2, 1")
    a("s_cmp_eq_u32 s40, 4")
    a("s_cselect_b32 s55, s55, 0")
    a("s_cmp_eq_u32 s55, 2")
    a("s_cbranch_scc0 L_NORESET")
    a("buffer_store_dwordx4 v[40:43], v49, s[28:31], s58 offen sc1")
    a.label("L_NORESET")
    reset_pos = len(vq)
    gb_loads()
    srd(a, 32, 16, 17, 256)
    own_box(62)
    a("s_lshl_b32 s60, s46, 4")
    a("v_lshlrev_b32 v42, 7, v17")
    a("s_lshl_b32 s57, s45, 12")
    a("s_add_u32 s57, s57, s62")
    a("s_getreg_b32 s48, hwreg(HW_REG_XCC_ID, 0, 4)")
    a("s_or_b32 s48, s48, 0x10")
    a("v_mov_b32 v41, s48")
    a("s_lshl_b32 s59, s47, 2")
    a("s_add_u32 s59, s59, s58")
    a("v_and_b32 v50, 15, v17")
    a("v_lshlrev_b32 v50, 2, v50")

    if opt.get("npf", 0):
        a("s_lshl_b32 s48, s42, 7")
        a("s_lshl_b32 s49, s41, 16")
        a("s_add_u32 s48, s48, s49")
        a("v_lshl_add_u32 v53, v17, 10, s48")
        a("s_lshl_b32 s6, s45, 2")
        a("s_lshl_b32 s48, s43, 1")
        a("s_add_u32 s6, s6, s48")
        a("s_add_u32 s6, s6, s44")
        a("s_lshl_b32 s6, s6, 20")
        a("s_add_u32 s6, s6, 0x80000")

    def lwait(tags):
        idx = max(k for k, tg in enumerate(vq) if tg in tags)
        n = len(vq) - 1 - idx
        assert n <= 63
        a(f"s_waitcnt vmcnt({n})")

    def one_lane(ins):
        a("s_mov_b64 exec, 1")
        a(ins)
        a("s_mov_b64 exec, -1")

    nu = N0
    pad_walk(2, "L_PADRETL")
    ST.stamp(2)
    lwait([("w", NW0 - 1)] + ([] if HS else ["x0"]))
    ST.stamp(3)
    a("s_barrier")
    ST.stamp(4)
    ST.cstamp(8)
    GAP = opt.get("gap", 4)
    opt.setdefault("per0", 4)
    N_RDY = opt.get("nrdy", 2)
    N_RL = opt.get("nrl", 5)
    N_XCC = N_RL + GAP
    N_CHK = N_XCC + GAP
    N_MODE = N_CHK + GAP
    N_TOUCH = opt.get("ntouch", 19)
    xq = [(i, e) for i in range(4) for e in range(2)] + [(4, 0)]
    X1 = opt.get("x1", 3)
    PER = opt.get("per", 3)
    PER2 = opt.get("per2", PER)
    pos = {}
    for n in range(NWB - 1):
        umax = min(NS - 1, 2 * n - 1 + RING_UNITS, 2 * n + 1 + LA)
        if HS and n < 2:
            umax = min(umax, RING_UNITS - 1)
        k = 0
        while nu <= umax and k < (opt.get("per0", 0) if (HS and n == 0) else (opt.get("perA", 2) if n <= opt.get("nA", 0) else PER)):
            w_unit(nu); nu += 1; k += 1
        assert nu > bar_list[n + 1], (n, nu)
        if n >= X1:
            for _ in range(opt.get("xper", 2)):
                if xq:
                    x_piece(1, *xq.pop(0)); vq.append("x1")
        if n == N_RDY and not opt.get("nohs"):
            a("s_cmp_eq_u32 s55, 2")
            a("s_cbranch_scc0 L_NORDY")
            a(f"s_waitcnt vmcnt({len(vq) - reset_pos})")
            one_lane("buffer_store_dword v41, v40, s[32:35], s60 offen sc1")
            a.label("L_NORDY")
        if n == N_RL and not opt.get("nohs"):
            a("s_cmp_eq_u32 s55, 0")
            a("s_cbranch_scc1 L_NORL")
            one_lane("buffer_load_dword v44, v40, s[32:35], s60 offen sc1")
            a.label("L_NORL")
            pos["rl"] = len(vq)
        if n == N_XCC and not opt.get("nohs"):
            a("s_cmp_eq_u32 s55, 0")
            a("s_cbranch_scc1 L_NOXCC")
            a(f"s_waitcnt vmcnt({len(vq) - pos['rl']})")
            a(f"s_mov_b32 s63, {SPIN_LIMIT}")
            a.label("L_RCHK")
            a("v_readfirstlane_b32 s48, v44")
            a("s_cmp_lg_u32 s48, 0")
            a("s_cbranch_scc1 L_ROK")
            a("s_sub_u32 s63, s63, 1")
            a("s_cmp_eq_u32 s63, 0")
            a("s_cbranch_scc1 L_ROK")
            a("s_sleep 4")
            one_lane("buffer_load_dword v44, v40, s[32:35], s60 offen sc1")
            a("s_waitcnt vmcnt(0)")
            a("s_branch L_RCHK")
            a.label("L_ROK")
            one_lane("buffer_store_dword v41, v40, s[28:31], s59 offen offset:256 sc1")
            a.label("L_NOXCC")
        if n == N_CHK and not opt.get("nohs"):
            a("s_cmp_eq_u32 s55, 0")
            a("s_cbranch_scc1 L_NOCHK")
            a("buffer_load_dword v44, v50, s[28:31], s58 offen offset:256 sc1")
            a.label("L_NOCHK")
            pos["chk"] = len(vq)
        if n == N_MODE and opt.get("nohs"):
            a("v_mov_b32 v45, 1")
            a(f"v_mov_b32 v46, {MODE_LDS}")
            a("ds_write_b32 v46, v45")
            a("s_waitcnt lgkmcnt(0)")
        if n == N_MODE and not opt.get("nohs"):
            a("s_cmp_eq_u32 s55, 0")
            a("s_cbranch_scc1 L_NOMODE")
            a(f"s_waitcnt vmcnt({len(vq) - pos['chk']})")
            a(f"s_mov_b32 s63, {SPIN_LIMIT}")
            a.label("L_HCHK")
            a("v_cmp_eq_u32 vcc, 0, v44")
            a("s_cmp_eq_u64 vcc, 0")
            a("s_cbranch_scc1 L_HOK")
            a("s_sub_u32 s63, s63, 1")
            a("s_cmp_eq_u32 s63, 0")
            a("s_cbranch_scc1 L_HOK")
            a("s_sleep 4")
            a("buffer_load_dword v44, v50, s[28:31], s58 offen offset:256 sc1")
            a("s_waitcnt vmcnt(0)")
            a("s_branch L_HCHK")
            a.label("L_HOK")
            a("v_cmp_ne_u32 vcc, v41, v44")
            a("s_cmp_eq_u64 vcc, 0")
            a("s_cselect_b32 s61, 1, 0")
            if opt.get("forceslow"):
                a("s_mov_b32 s61, 0")
            a("v_mov_b32 v45, s61")
            a(f"v_mov_b32 v46, {MODE_LDS}")
            a("ds_write_b32 v46, v45")
            a("s_waitcnt lgkmcnt(0)")
            a.label("L_NOMODE")
        if n == N_MODE + 1:
            a(f"v_mov_b32 v46, {MODE_LDS}")
            a("ds_read_b32 v45, v46")
            a("s_waitcnt lgkmcnt(0)")
            a("v_readfirstlane_b32 s61, v45")
            a("s_and_b32 s49, s61, s55")
            a("s_cmp_eq_u32 s49, 1")
            a("s_cbranch_scc0 L_NOFT")
            a("s_mov_b64 exec, 0xff")
            a("buffer_load_dword v43, v42, s[28:31], s58 offen")
            a("s_mov_b64 exec, -1")
            a.label("L_NOFT")
        if opt.get("touch", 1) and n == N_TOUCH:
            a("s_mov_b32 exec_hi, 0")
            a(f"s_xor_b32 s48, s57, {RBOX}")
            a("buffer_load_dword v48, v42, s[28:31], s48 offen"); vq.append("touch")
            a("s_mov_b64 exec, -1")
        if opt.get("npf", 0):
            for w in range(4):
                if n == opt["npf"] + w * opt.get("pfstep", 1):
                    a(f"s_cmp_eq_u32 s45, {w}")
                    a(f"s_cbranch_scc0 L_NOPF{w}")
                    a("buffer_load_dword v54, v53, s[24:27], s6 offen")
                    a.label(f"L_NOPF{w}")
        if opt.get("touchout") and n == N_TOUCH + 1:
            a("v_lshl_add_u32 v51, v17, 4, s47")
            a("s_mul_i32 s48, s43, 485")
            a("v_add_u32 v51, s48, v51")
            a("v_lshlrev_b32 v51, 10, v51")
            a("s_lshl_b32 s48, s42, 7")
            a("s_cmp_eq_u32 s40, 5")
            a("s_cbranch_scc0 L_NOTO")
            a("s_mov_b64 exec, 0x7fffffff")
            a("buffer_load_dword v52, v51, s[36:39], s48 offen")
            a("s_mov_b64 exec, -1")
            a.label("L_NOTO")
        need = [("w", bar_list[n + 1])]
        if HS and n == 0:
            need.append("x0")
        if n + 1 == AV1:
            assert not xq
            need.append("x1")
        if opt.get("trace"):
            a("s_memrealtime s[66:67]")
            a("s_waitcnt lgkmcnt(0)")
            a(f"v_writelane_b32 v60, s66, {n}")
        lwait(need)
        if opt.get("trace"):
            a("s_memrealtime s[66:67]")
            a("s_waitcnt lgkmcnt(0)")
            a(f"v_writelane_b32 v61, s66, {n}")
        a("s_barrier")
        if opt.get("trace"):
            a("s_memrealtime s[66:67]")
            a("s_waitcnt lgkmcnt(0)")
            a(f"v_writelane_b32 v62, s66, {n}")
    if opt.get("trace"):
        a(f"s_add_u32 s96, s18, {128<<20}")
        a("s_addc_u32 s97, s19, 0")
        a("s_and_b32 s97, s97, 0xffff")
        a("s_mov_b32 s98, 0x1000000")
        a("s_mov_b32 s99, 0x20000")
        a("s_lshl_b32 s100, s2, 2")
        a("s_add_u32 s100, s100, s45")
        a("s_mul_i32 s100, s100, 768")
        a("v_lshlrev_b32 v63, 2, v17")
        a("buffer_store_dword v60, v63, s[96:99], s100 offen")
        a("buffer_store_dword v61, v63, s[96:99], s100 offen offset:256")
        a("buffer_store_dword v62, v63, s[96:99], s100 offen offset:512")
    assert nu == NS
    assert N_MODE < B_MODE
    ST.stamp(5)
    ST.cstamp(9)
    if ST.on:
        a("s_getreg_b32 s76, hwreg(HW_REG_XCC_ID)")
        a("s_add_u32 s76, s76, 1000")
    a("s_cmp_eq_u32 s61, 1")
    a(f"s_cselect_b32 s48, 0, {EX_BYTES}")
    a("s_add_u32 s62, s57, s48")
    a("s_lshl_b32 s59, s47, 5")
    a("s_add_u32 s59, s59, s58")
    a("s_lshl_b32 s48, s45, 3")
    a("s_add_u32 s59, s59, s48")
    a("v_and_b32 v50, 1, v17")
    a("v_lshlrev_b32 v50, 2, v50")
    a("s_lshl_b32 s54, s45, 12")
    if opt.get("pads", 1) and opt.get("late", 1):
        a("s_mov_b64 exec, 0")
        for w in range(4):
            a(f"s_cmp_eq_u32 s45, {w}")
            a(f"s_cbranch_scc1 L_LATE{w}")
        a.label("L_PADRETT")
        a("s_mov_b64 exec, -1")
    tail_setup()
    a("s_cmp_eq_u32 s61, 1")
    a(f"s_cselect_b32 s48, 0, {2 * EX_BYTES}")
    a("s_add_u32 s56, s56, s48")
    a(f"s_add_u32 s57, s56, {2 * RBOX}")
    a.label("L_APOLL")
    a("s_sleep %d" % opt.get("asleep", 1))
    a("buffer_load_dword v44, v50, s[28:31], s59 offen offset:512 sc1")
    a("s_sub_u32 s63, s63, 1")
    a("s_waitcnt vmcnt(0)")
    a("s_cmp_eq_u32 s63, 0")
    a("s_cbranch_scc1 L_AGOT")
    a("v_cmp_ne_u32 vcc, 1, v44")
    a("s_cmp_eq_u64 vcc, 0")
    a("s_cbranch_scc0 L_APOLL")
    a.label("L_AGOT")
    a("s_mov_b32 m0, s54")
    a(f"s_mov_b32 s63, {SPIN_LIMIT}")
    for q in range(4):
        a(f"buffer_load_dwordx4 v49, s[28:31], s62 offen offset:{q*1024} sc1 lds")
    a("s_waitcnt vmcnt(0)")
    a("s_barrier")
    a("s_barrier")
    ST.stamp(14)
    a("s_branch L_POLL")
    a.label("L_CODE_END")
    return NV


def insert_pads(a, spacing, first, late):
    import subprocess, re, tempfile
    is_ins = lambda ln: ln.startswith("    ") and not ln.strip().startswith(";")

    def addresses():
        defined = {ln[:-1] for ln in a.lines if ln.endswith(":")}
        extra = "".join(f"L_PAD{j}:\n" for j in range(1, 200) if f"L_PAD{j}" not in defined)
        extra += "".join(f"L_LATE{j}:\n" for j in range(40))
        src = '.amdgcn_target "amdgcn-amd-amdhsa--gfx950"\n.text\n' + a.text() + extra
        with tempfile.TemporaryDirectory() as d:
            open(d + "/t.s", "w").write(src)
            subprocess.run(["clang", "-x", "assembler", "-target", "amdgcn-amd-amdhsa", "-mcpu=gfx950", "-c", d + "/t.s", "-o", d + "/t.o"], check=True)
            dis = subprocess.run(["llvm-objdump", "-d", "--mcpu=gfx950", d + "/t.o"], capture_output=True, text=True).stdout
        return [int(m.group(1), 16) for m in re.finditer(r"// ([0-9A-F]{12}):", dis)]

    addrs = addresses()
    idx = [i for i, ln in enumerate(a.lines) if is_ins(ln)]
    assert len(addrs) == len(idx), (len(addrs), len(idx))
    nopad = set()
    off_ = False
    for i_, ln in enumerate(a.lines):
        t_ = ln.strip()
        if off_:
            nopad.add(i_)
        if (t_.startswith("s_mov_b64 exec") and not t_.endswith("-1")) or "saveexec" in t_ or "exec_lo" in t_ or "exec_hi" in t_:
            off_ = True
        if t_ == "s_mov_b64 exec, -1" or t_ == "s_endpgm":
            off_ = False
    pos = []
    k = 0
    n = 0
    while True:
        target = first + k * spacing
        while n < len(addrs) and addrs[n] + 4 * k < target:
            n += 1
        if n >= len(addrs) - 4:
            break
        while idx[n] in nopad:
            n += 1
        pos.append(idx[n]); n += 1; k += 1
    lb = next(i_ for i_, ln in enumerate(a.lines) if "LATE_BEGIN" in ln)
    le = next(i_ for i_, ln in enumerate(a.lines) if "LATE_END" in ln)
    lpos = [q for q in pos if late and lb <= q < le]
    epos = [q for q in pos if q not in lpos]
    NP, NL = len(epos), len(lpos)
    assert NP >= 8 and (not late or NL >= 4), (NP, NL)
    ins = {}
    for k in range(1, NP + 1):
        nxt = f"L_PAD{k + 8}" if k + 8 <= NP else ("L_PADRETC" if k % 2 == 1 else "L_PADRETL")
        ins[epos[k - 1]] = [f"L_PAD{k}:", f"    s_cbranch_execz {nxt}"]
    for k in range(NL):
        nxt = f"L_LATE{k + 4}" if k + 4 < NL else "L_PADRETT"
        ins[lpos[k]] = [f"L_LATE{k}:", f"    s_cbranch_execz {nxt}"]
    for q in sorted(ins, reverse=True):
        a.lines[q:q] = ins[q]
    print("pads:", NP, NL, file=sys.stderr)


def main():
    opt = {}
    for arg in sys.argv[2:]:
        k, v = arg.split("=")
        opt[k] = int(v)
    a = Asm()
    nv = gen(a, opt)
    if opt.get("pads", 1):
        insert_pads(a, opt.get("pspace", 512), opt.get("pfirst", 2560), opt.get("late", 1))
    out = HEADER
    out += f"; @launch grid=(256,1,1) block=(512,1,1) lds={LDS_BYTES}\n"
    out += '.amdgcn_target "amdgcn-amd-amdhsa--gfx950"\n.text\n'
    out += a.text()
    out += '.section .rodata,"a"\n'
    out += kd(KNAME, nv, 102 if (opt.get("stamps") or opt.get("fixed") or opt.get("trace")) else 64)
    open(sys.argv[1], "w").write(out)


if __name__ == "__main__":
    main()
```
